```python
import torch

def _softmax(x, axis=-1):
    return torch.softmax(x, dim=axis)
def _gelu(x):
    return torch.nn.functional.gelu(x, approximate="tanh")
def _silu(x):
    return torch.nn.functional.silu(x)
def _sigmoid(x):
    return torch.sigmoid(x)
def _layernorm(x, axis=-1, eps=1e-5):
    m = x.mean(dim=axis, keepdim=True)
    v = x.var(dim=axis, keepdim=True, unbiased=False)
    return (x - m) / torch.sqrt(v + eps)
def _scatter_add(tgt, idx, src, axis=0):
    return tgt.clone().index_add_(axis, idx, src)
def _segment_sum(src, seg, n):
    out = torch.zeros((n,) + src.shape[1:], dtype=src.dtype)
    return out.index_add_(0, seg, src)
def _pad(x, pw):
    flat = tuple(v for pair in reversed(pw) for v in pair)
    return torch.nn.functional.pad(x, flat)

kernel_name = 'parallel_sum__grouped_kv_mqa__dense_activation_squared_relu__prompt'

def setup_inputs():

    _w = (lambda a: (lambda t: t.to(torch.bfloat16) if t.is_floating_point() else t)(torch.as_tensor(a)))
    def _A_setup():
        B, S, D, H = 1, 2048, 576, 32
        Dh = D // H
        return {
            "x": _w((lambda *s: torch.randn(*s, dtype=torch.bfloat16) * 0.05)(B, S, D)),
            "wq": _w((lambda *s: torch.randn(*s, dtype=torch.bfloat16) * 0.2)(D, H * Dh)),
            "wk": _w((lambda *s: torch.randn(*s, dtype=torch.bfloat16) * 0.2)(D, Dh)),
            "wv": _w((lambda *s: torch.randn(*s, dtype=torch.bfloat16) * 0.1)(D, Dh)),
            "wo": _w((lambda *s: torch.randn(*s, dtype=torch.bfloat16) * 0.1)(H * Dh, D)),
        }
    _A_in = _A_setup()

    def _B_setup():
        B, S, D, F = 1, 2048, 576, 4608
        return {
            "x": _w((lambda *s: torch.randn(*s, dtype=torch.bfloat16) * 0.05)(B, S, D)),
            "w1": _w((lambda *s: torch.randn(*s, dtype=torch.bfloat16) * 0.05)(D, F)),
            "b1": _w((lambda *s: torch.randn(*s, dtype=torch.bfloat16) * 0.8)(F)),
            "w2": _w((lambda *s: torch.randn(*s, dtype=torch.bfloat16) * 0.05)(F, D)),
            "b2": _w((lambda *s: torch.randn(*s, dtype=torch.bfloat16) * 12.8)(D)),
        }
    _B_in = _B_setup()

    return {
        "A_x": _A_in["x"],
        "A_wq": _A_in["wq"],
        "A_wk": _A_in["wk"],
        "A_wv": _A_in["wv"],
        "A_wo": _A_in["wo"],
        "B_x": _B_in["x"],
        "B_w1": _B_in["w1"],
        "B_b1": _B_in["b1"],
        "B_w2": _B_in["w2"],
        "B_b2": _B_in["b2"],
    }

def reference(A_x, A_wq, A_wk, A_wv, A_wo, B_x, B_w1, B_b1, B_w2, B_b2):
    def _A_ref(x, wq, wk, wv, wo):
        B, S, D = x.shape
        H = 32
        Dh = D // H
        q = (lambda x, *d: x.permute(*d))((x @ wq).reshape(B, S, H, Dh), 0, 2, 1, 3)
        k = x @ wk
        v = x @ wv
        scores = torch.einsum("bhqd,bkd->bhqk", q, k) * (Dh ** -0.5)
        p = _softmax(scores, axis=-1)
        o = torch.einsum("bhqk,bkd->bhqd", p, v)
        return (lambda x, *d: x.permute(*d))(o, 0, 2, 1, 3).reshape(B, S, H * Dh) @ wo

    def _B_ref(x, w1, b1, w2, b2):
        h = torch.einsum("bsd,df->bsf", x, w1) + b1
        zero = torch.zeros_like(h)
        r = torch.where(h > zero, h, zero)
        h = r * r
        out = torch.einsum("bsf,fd->bsd", h, w2) + b2
        return out

    x = A_x
    xn = _layernorm(x, axis=-1)
    return x + _A_ref(xn, A_wq, A_wk, A_wv, A_wo) + _B_ref(xn, B_w1, B_b1, B_w2, B_b2)
```

```python
import re


class Asm:
    def __init__(self):
        self.lines = []

    def __call__(self, s, *a):
        for ln in s.split("\n"):
            ln = ln.strip()
            if ln:
                self.lines.append(ln)

    def label(self, name):
        self.lines.append(name + ":")

    def comment(self, s):
        self.lines.append("; " + s)

    def extend(self, lst):
        for x in lst:
            self(x)

    def text(self):
        out = []
        for ln in self.lines:
            if ln.endswith(":") or ln.startswith(".") or ln.startswith(";"):
                out.append(ln)
            else:
                out.append("    " + ln)
        return "\n".join(out) + "\n"


def vr(base, n=1):
    return f"v{base}" if n == 1 else f"v[{base}:{base + n - 1}]"


def ar(base, n=1):
    return f"a{base}" if n == 1 else f"a[{base}:{base + n - 1}]"


def sr(base, n=1):
    return f"s{base}" if n == 1 else f"s[{base}:{base + n - 1}]"


_REG = re.compile(r"\b([vas])(?:(\d+)\b|\[(\d+):(\d+)\])")
TRANS = ("v_exp_f32", "v_log_f32", "v_rcp_f32", "v_rsq_f32", "v_sqrt_f32", "v_sin_f32", "v_cos_f32")


def regs_of(op):
    out = set()
    for m in _REG.finditer(op):
        k = m.group(1)
        if m.group(2) is not None:
            out.add((k, int(m.group(2))))
        else:
            for i in range(int(m.group(3)), int(m.group(4)) + 1):
                out.add((k, i))
    if re.search(r"\bvcc\b", op):
        out |= {("s", 106), ("s", 107)}
    if re.search(r"\bvcc_lo\b", op):
        out.add(("s", 106))
    if re.search(r"\bvcc_hi\b", op):
        out.add(("s", 107))
    if re.search(r"\bm0\b", op):
        out.add(("m", 0))
    if re.search(r"\bexec\b", op):
        out.add(("e", 0))
    return out


def split_ops(rest):
    ops, depth, cur = [], 0, ""
    for ch in rest:
        if ch == "[":
            depth += 1
        if ch == "]":
            depth -= 1
        if ch == "," and depth == 0:
            ops.append(cur.strip())
            cur = ""
        else:
            cur += ch
    if cur.strip():
        ops.append(cur.strip())
    return ops


class Ins:
    pass


def parse(ln):
    ln = ln.split(";")[0].strip()
    if not ln or ln.endswith(":") or ln.startswith("."):
        return None
    parts = ln.split(None, 1)
    i = Ins()
    i.text = ln
    i.op = parts[0]
    ops = split_ops(parts[1]) if len(parts) > 1 else []
    i.ops = ops
    i.w, i.r = set(), set()
    i.kind = "other"
    op = i.op
    if op.startswith("v_mfma"):
        i.kind = "mfma"
        i.w = regs_of(ops[0])
        i.a = regs_of(ops[1])
        i.b = regs_of(ops[2])
        i.c = regs_of(ops[3])
        i.r = i.a | i.b | i.c
        i.passes = 8 if "32x32" in op else 4
    elif op.startswith("v_"):
        i.kind = "valu"
        if op.startswith("v_cmp"):
            i.w = regs_of(ops[0])
            for o in ops[1:]:
                i.r |= regs_of(o)
        elif op.startswith("v_permlane") or op.startswith("v_swap"):
            i.w = regs_of(ops[0]) | regs_of(ops[1])
            i.r = set(i.w)
        elif op.startswith(("v_add_co", "v_sub_co", "v_addc_co", "v_subb_co")):
            i.w = regs_of(ops[0]) | regs_of(ops[1])
            for o in ops[2:]:
                i.r |= regs_of(o)
        else:
            i.w = regs_of(ops[0])
            for o in ops[1:]:
                i.r |= regs_of(o)
            if op.startswith(("v_fmac", "v_dot2c", "v_pk_fmac")):
                i.r |= i.w
    elif op.startswith(("buffer_", "global_")):
        i.kind = "vmem"
        lds = re.search(r"\blds\b", ln) is not None or "load_lds" in op
        i.lds = lds
        if "store" in op or "atomic" in op:
            for o in ops:
                i.r |= regs_of(o)
            i.store = True
            i.data = regs_of(ops[0]) if op.startswith("buffer_") else regs_of(ops[1])
            i.wide = "x4" in op or "x3" in op
        else:
            i.store = False
            if lds:
                for o in ops:
                    i.r |= regs_of(o)
                i.r.add(("m", 0))
            else:
                i.w = regs_of(ops[0])
                for o in ops[1:]:
                    i.r |= regs_of(o)
    elif op.startswith("ds_"):
        i.kind = "ds"
        if "read" in op or "bpermute" in op or "swizzle" in op:
            i.w = regs_of(ops[0])
            for o in ops[1:]:
                i.r |= regs_of(o)
        else:
            for o in ops:
                i.r |= regs_of(o)
    elif op.startswith("s_"):
        i.kind = "salu"
        if op in ("s_nop",):
            i.nop = int(ops[0], 0) + 1
        elif op.startswith(("s_cmp", "s_bitcmp", "s_waitcnt", "s_barrier", "s_branch", "s_cbranch", "s_setprio", "s_endpgm", "s_sleep")):
            for o in ops:
                i.r |= regs_of(o)
        else:
            if ops:
                i.w = regs_of(ops[0])
            for o in ops[1:]:
                i.r |= regs_of(o)
    return i


def check_hazards(lines, name=""):
    ins = [x for x in (parse(l) for l in lines) if x is not None]
    probs = []
    pos = []
    p = 0
    for x in ins:
        pos.append(p)
        p += getattr(x, "nop", 1)
    n = len(ins)
    for j, c in enumerate(ins):
        k = j - 1
        while k >= 0 and pos[j] - pos[k] <= 21:
            pr = ins[k]
            d = pos[j] - pos[k] - getattr(pr, "nop", 1)
            need = 0
            why = ""
            if pr.kind == "valu":
                vw = {r for r in pr.w if r[0] in "va"}
                sw = {r for r in pr.w if r[0] == "s"}
                if c.kind == "mfma" and vw & c.r:
                    need, why = 2, "valu->mfma"
                if c.kind == "valu" and c.op.startswith("v_permlane") and vw & c.r:
                    need, why = max(need, 2), "valu->permlane"
                if c.kind == "valu" and c.op.startswith(("v_readfirstlane", "v_readlane")) and vw & c.r:
                    need, why = max(need, 1), "valu->readlane"
                if pr.op in TRANS and c.kind == "valu" and c.op not in TRANS and vw & c.r:
                    need, why = max(need, 1), "trans->valu"
                if pr.op in TRANS and c.kind in ("vmem", "ds") and vw & c.r:
                    need, why = max(need, 1), "trans->mem"
                if sw and c.kind == "vmem" and sw & c.r:
                    need, why = max(need, 5), "valu sgpr->vmem"
                if sw and c.kind == "valu" and sw & c.r:
                    need, why = max(need, 2), "valu sgpr->valu"
                if pr.op.startswith("v_dot2") and vw & (c.r | c.w) and not (c.kind == "valu" and c.op == pr.op):
                    need, why = max(need, 3), "dot->other"
                if "dpp" in c.text and vw & c.r:
                    need, why = max(need, 2), "valu->dpp"
            if pr.kind == "mfma":
                big = {8: 12, 4: 8}[pr.passes]
                if c.kind == "mfma":
                    if pr.w & (c.a | c.b):
                        need, why = big, "mfma->mfma AB"
                    elif pr.w & c.c and not (pr.w == c.c and pr.passes == c.passes):
                        need, why = {8: 10, 4: 6}[pr.passes], "mfma->mfma C overlap"
                elif c.kind in ("valu", "vmem", "ds"):
                    if pr.w & (c.r | c.w):
                        need, why = big, "mfma D->use"
                    if c.kind == "valu" and pr.c & c.w:
                        need2 = {8: 7, 4: 3}[pr.passes]
                        if need2 > need:
                            need, why = need2, "mfma C WAR"
            if pr.kind == "salu" and ("m", 0) in pr.w and c.kind == "vmem" and getattr(c, "lds", False):
                need, why = max(need, 1), "m0->dma"
            if pr.kind == "vmem" and getattr(pr, "store", False) and pr.wide and c.kind in ("valu",) and pr.data & c.w:
                need, why = max(need, 2), "store data WAR"
            if need > d:
                probs.append(f"[{name}] {why}: need {need} have {d}:\n    {pr.text}\n    {c.text}")
            k -= 1
    return probs


class VM:
    def __init__(self):
        self.q = []

    def issue(self, tag):
        self.q.append(tag)

    def count_for(self, tag):
        idx = [i for i, t in enumerate(self.q) if t == tag]
        if not idx:
            return None
        n = len(self.q) - 1 - idx[-1]
        self.q = self.q[idx[-1] + 1:]
        return n
```

```python
import struct
import sys
from asmlib import Asm, VM, check_hazards, vr, sr

NAME = "parallel_sum__grouped_kv_mqa__dense_activation_squared_relu__prompt"

WS_Y = 0
Y_MSUB = 324 * 1024
WS_KV = 0x1500000
KV_TILE = 2368
WS_O = 0x1600000
WS_P = 0x1900000
P_SLICE = 64 * 18 * 2048
WS_BYTES = 0x10000000
OOB = 0x7FFF0000

X_BYTES = 2048 * 576 * 2
REGION = 0x12000


def f32(x):
    return struct.unpack("<I", struct.pack("<f", x))[0]


QSCALE = 1.4426950408889634 / (18 ** 0.5)


def srd(a, d, ptr, nbytes):
    a(f"s_mov_b32 s{d}, s{ptr}")
    a(f"s_mov_b32 s{d+1}, s{ptr+1}")
    a(f"s_mov_b32 s{d+2}, {nbytes}")
    a(f"s_mov_b32 s{d+3}, 0x00020000")


DIAG = False
K3_KID = 2
WS_DIAG = 0x8000000


def stamp(a, i):
    if DIAG:
        a(f"s_memtime s[90:91]")
        a("s_waitcnt lgkmcnt(0)")
        a(f"s_mov_b32 s{70+i}, s90")


def stamp_rt(a, i):
    if DIAG:
        a(f"s_memrealtime s[90:91]")
        a("s_waitcnt lgkmcnt(0)")
        a(f"s_mov_b32 s{70+i}, s90")


def diag_dump(a, kid, nwaves, s_wave=40, s_ws=12):
    if not DIAG:
        return
    stamp(a, 14)
    stamp_rt(a, 15)
    a("s_getreg_b32 s82, hwreg(HW_REG_XCC_ID)")
    a("s_mov_b64 exec, -1")
    a(f"s_mul_i32 s90, s2, {nwaves}")
    a(f"s_add_u32 s90, s90, s{s_wave}")
    a("s_lshl_b32 s90, s90, 6")
    a(f"s_add_u32 s90, s90, {WS_DIAG + kid * 0x100000}")
    a("v_mov_b32 v0, 0")
    for i in range(16):
        a(f"v_mov_b32 v1, s{70+i}")
        a(f"buffer_store_dword v1, v0, s[{s_ws}:{s_ws+3}], s90 offen offset:{4*i}")


def kernel_header(a, name):
    a(f".globl {name}")
    a(".p2align 8")
    a(f".type {name},@function")
    a.label(name)


def descriptor(name, nvgpr, nsgpr=102, accum=None):
    accum = accum if accum is not None else (nvgpr + 3) // 4 * 4
    return f""".p2align 6
.amdhsa_kernel {name}
  .amdhsa_next_free_vgpr {nvgpr}
  .amdhsa_next_free_sgpr {nsgpr}
  .amdhsa_accum_offset {accum}
  .amdhsa_group_segment_fixed_size 0
  .amdhsa_kernarg_size 104
  .amdhsa_user_sgpr_count 2
  .amdhsa_user_sgpr_kernarg_segment_ptr 1
  .amdhsa_system_sgpr_workgroup_id_x 1
.end_amdhsa_kernel
"""


V_L = 1
V_DOFF = 2
V_RD = 5
V_ST = 9
V_PA1, V_PB1, V_PA0, V_PB0 = 10, 11, 12, 13
V_BOFF = 14
V_TMP = 28
V_ONE = 16
V_B0 = 20
V_B1 = 24
V_W = 32
V_T = 56
V_K = 72
V_A0 = 80
V_A1 = 96
V_X = 112

S_W = 8
S_WS = 12
S_B = 16
S_WAVE = 40
S_U = 44
S_DOFF = 45
S_REG = 46
S_REGW = 47
S_ST0 = 50
S_ST1 = 51
S_CH = 53
S_G3 = 54
S_SINGLE = 55
S_W6144 = 57
S_BO0 = 58
S_BO1 = 59
S_T0 = 60
S_T1 = 61
S_T2 = 62


def emit_lane_consts(a, native):
    a(f"v_and_b32 v{V_L}, 63, v0")
    a(f"v_lshrrev_b32 v{V_TMP}, 6, v0")
    a("s_nop 0")
    a(f"v_readfirstlane_b32 s{S_WAVE}, v{V_TMP}")
    l = V_L
    t0, t1, t2, t3 = V_TMP, V_TMP + 1, V_TMP + 2, V_TMP + 3
    a(f"v_lshrrev_b32 v{t0}, 5, v{l}")
    a(f"v_bfe_u32 v{t1}, v{l}, 2, 2")
    a(f"v_lshl_add_u32 v{t0}, v{t0}, {2 if native else 3}, v{t1}")
    a(f"v_lshlrev_b32 v{t0}, 7, v{t0}")
    a(f"v_bfe_u32 v{t2}, v{l}, 4, 1")
    a(f"v_bfe_u32 v{t3}, v{l}, 1, 1")
    a(f"v_lshl_add_u32 v{t2}, v{t2}, 1, v{t3}")
    a(f"v_lshrrev_b32 v{t1}, 1, v{t1}")
    a(f"v_lshlrev_b32 v{t1}, 2, v{t1}")
    a(f"v_xor_b32 v{t2}, v{t2}, v{t1}")
    a(f"v_lshl_add_u32 v{t0}, v{t2}, 4, v{t0}")
    a(f"v_and_b32 v{t3}, 1, v{l}")
    a(f"v_lshl_add_u32 v{V_RD}, v{t3}, 3, v{t0}")
    a(f"v_add_u32 v{V_RD+1}, 0x9000, v{V_RD}")
    a(f"v_xor_b32 v{V_RD+2}, 64, v{V_RD}")
    a(f"v_xor_b32 v{V_RD+3}, 64, v{V_RD+1}")
    a(f"v_lshlrev_b32 v{V_ST}, 4, v{l}")
    a(f"s_mul_i32 s{S_W6144}, s{S_WAVE}, 6144")


def emit_dma_voffsets(a, s_stride, bias=0):
    l = V_L
    t0, t1, t2 = V_TMP, V_TMP + 1, V_TMP + 2
    a(f"v_lshrrev_b32 v{t0}, 3, v{l}")
    a(f"v_and_b32 v{t1}, 7, v{l}")
    a(f"v_bfe_u32 v{t2}, v{l}, 4, 1")
    a(f"v_lshlrev_b32 v{t2}, 2, v{t2}")
    a(f"v_xor_b32 v{t1}, v{t1}, v{t2}")
    a(f"v_mul_lo_u32 v{t0}, v{t0}, s{s_stride}")
    a(f"v_lshl_add_u32 v{V_DOFF}, v{t1}, 4, v{t0}")
    if bias:
        a(f"v_add_u32 v{V_DOFF}, {bias}, v{V_DOFF}")
    a(f"s_lshl_b32 s{S_T0}, s{s_stride}, 3")
    a(f"s_sub_u32 s{S_T0}, s{S_T0}, 1024")
    a(f"v_add_u32 v{V_DOFF+1}, s{S_T0}, v{V_DOFF}")
    a(f"v_add_u32 v{V_DOFF+2}, s{S_T0}, v{V_DOFF+1}")
    a(f"s_mul_i32 s{S_CH}, s{s_stride}, 192")
    a(f"s_mul_i32 s{S_G3}, s{s_stride}, 24")


def dma_groups(srd_w=S_W):
    groups = []
    for c in range(3):
        for gmm in range(2):
            g = []
            if c == 0 and gmm == 0:
                g.append(f"s_mov_b32 s{S_T1}, s{S_DOFF}")
                g.append(f"s_mov_b32 s{S_T2}, s{S_DOFF}")
            elif gmm == 1:
                g.append(f"s_add_u32 s{S_T1}, s{S_T2}, s{S_G3}")
            else:
                g.append(f"s_add_u32 s{S_T2}, s{S_T2}, s{S_CH}")
                g.append(f"s_mov_b32 s{S_T1}, s{S_T2}")
            g.insert(0, f"s_add_u32 m0, s{S_REGW}, {c*24576 + gmm*3072}")
            for i in range(3):
                g.append(("DMA", c, f"buffer_load_dwordx4 v{V_DOFF+i}, s[{srd_w}:{srd_w+3}], s{S_T1} offen offset:{1024*i} lds"))
            groups.append(g)
    return groups


def frag_reads(f, native):
    sub, s = divmod(f, 36)
    base = V_RD + 2 * sub + (1 if s >= 18 else 0)
    off = (s % 18) * 2048
    d = V_W + 4 * (f % 6)
    o2 = 1024 if native else 512
    return [f"ds_read_b64_tr_b16 v[{d}:{d+1}], v{base} offset:{off}",
            f"ds_read_b64_tr_b16 v[{d+2}:{d+3}], v{base} offset:{off+o2}"]


def epilogue(kind, acc, pa, pb, s_st):
    out = []
    if kind == "act":
        for r in range(16):
            out.append(f"v_med3_f32 v{V_T+r}, v{acc+r}, v{pa}, v{pb}")
            out.append(f"v_mul_f32 v{V_T+r}, v{V_T+r}, v{acc+r}")
            if r % 2 == 1:
                out.append(f"v_cvt_pk_bf16_f32 v{V_K+r//2}, v{V_T+r-1}, v{V_T+r}")
            if r == 7:
                out.append(("ST", f"buffer_store_dwordx4 v[{V_K}:{V_K+3}], v{V_ST}, s[{S_WS}:{S_WS+3}], s{s_st} offen"))
        out.append(("ST", f"buffer_store_dwordx4 v[{V_K+4}:{V_K+7}], v{V_ST}, s[{S_WS}:{S_WS+3}], s{s_st} offen offset:1024"))
    else:
        for i in range(8):
            out.append(f"v_cvt_pk_bf16_f32 v{V_K+i}, v{acc+2*i}, v{acc+2*i+1}")
            if i == 3:
                out.append(("ST", f"buffer_store_dwordx4 v[{V_K}:{V_K+3}], v{V_ST}, s[{S_WS}:{S_WS+3}], s{s_st} offen"))
        out.append(("ST", f"buffer_store_dwordx4 v[{V_K+4}:{V_K+7}], v{V_ST}, s[{S_WS}:{S_WS+3}], s{s_st} offen offset:1024"))
    return out


def plain(lst):
    return [x if isinstance(x, str) else x[-1] for x in lst]


V_PF = 0
S_PF = 69
LOOP_PF = False
SYNC_LDS = 2 * REGION
S_TGT = 66
V_SYNC = 15
_sync_id = [0]


def soft_barrier(pfx):
    _sync_id[0] += 1
    lb = f"{pfx}_sb@"
    return [
        "s_mov_b64 exec, 1",
        f"ds_add_u32 v{V_SYNC}, v{V_TMP+3}",
        "s_mov_b64 exec, -1",
        f"s_add_u32 s{S_TGT}, s{S_TGT}, 4",
        lb + ":",
        f"ds_read_b32 v{V_TMP+2}, v{V_SYNC}",
        "s_waitcnt lgkmcnt(0)",
        f"v_readfirstlane_b32 s{S_TGT+1}, v{V_TMP+2}",
        f"s_cmp_ge_u32 s{S_TGT+1}, s{S_TGT}",
        f"s_cbranch_scc0 {lb}",
    ]


def uniq_labels(lines):
    out, n = [], 0
    for ln in lines:
        if "@" in ln:
            if ln.endswith(":"):
                n = _sync_id[0] = _sync_id[0] + 1
            ln = ln.replace("@", str(n))
        out.append(ln)
    return out


def gemm_body(pfx, native, has_bias, epi_kind, vm, n_full, next_st_expr, top_hook, soft=False):
    L = []

    def put(x):
        if isinstance(x, str):
            L.append(x)
        elif x[0] == "DMA":
            vm.issue(("dma", x[1]))
            L.append(x[2])
        elif x[0] == "ST":
            vm.issue("st")
            L.append(x[1])
        elif x[0] == "LD":
            vm.issue(x[1])
            L.append(x[2])

    def wait(tag):
        n = vm.count_for(tag)
        if n is not None:
            assert n <= 63
            L.append(f"s_waitcnt vmcnt({n})")

    fill = {f: [] for f in range(72)}
    if has_bias:
        fill[0].append(("LD", "b0", f"buffer_load_ushort v{V_B0}, v{V_BOFF}, s[{S_B}:{S_B+3}], s{S_BO0} offen"))
        fill[0].append(("LD", "b1", f"buffer_load_ushort v{V_B1}, v{V_BOFF}, s[{S_B}:{S_B+3}], s{S_BO1} offen"))
    groups = dma_groups()
    gpos = [1, 6, 11, 16, 21, 26]
    for g, p in zip(groups, gpos):
        for k, x in enumerate(g):
            fill[p + k * 5 // len(g)].append(x)
    ep1 = epilogue(epi_kind, V_A1, V_PA1, V_PB1, S_ST1)
    lo, hi = 3, 33
    for k, x in enumerate(ep1):
        fill[lo + k * (hi - lo) // len(ep1)].append(x)
    ep0 = epilogue(epi_kind, V_A0, V_PA0, V_PB0, S_ST0)
    lo, hi = 39, 69
    for k, x in enumerate(ep0):
        fill[lo + k * (hi - lo) // len(ep0)].append(x)
    if LOOP_PF:
        fill[34].append(("LD", "pf", f"buffer_load_dword v{V_TMP+3}, v{V_PF}, s[20:23], s{S_PF} offen"))
        fill[35].append(f"s_add_u32 s{S_PF}, s{S_PF}, 128")
    fill[40].append(f"v_xor_b32 v{V_RD}, {REGION}, v{V_RD}")
    fill[41].append(f"v_xor_b32 v{V_RD+1}, {REGION}, v{V_RD+1}")
    fill[50].append(f"v_xor_b32 v{V_RD+2}, {REGION}, v{V_RD+2}")
    fill[68].append(f"v_xor_b32 v{V_RD+3}, {REGION}, v{V_RD+3}")
    tail = [
        f"s_xor_b32 s{S_REG}, s{S_REG}, {REGION}",
        f"s_add_u32 s{S_REGW}, s{S_REG}, s{S_W6144}",
        f"s_add_u32 s{S_DOFF}, s{S_DOFF}, 128",
        f"s_add_u32 s{S_ST1}, s{S_ST0}, 2048",
    ] + next_st_expr
    if has_bias:
        tail += [
            f"s_add_u32 s{S_BO1}, s{S_BO0}, 64",
            f"s_add_u32 s{S_BO0}, s{S_BO0}, 128",
            f"v_mov_b32 v{V_PA1}, v{V_PA0}",
            f"v_mov_b32 v{V_PB1}, v{V_PB0}",
            f"v_mov_b32 v{V_PA0}, 0",
            f"v_mov_b32 v{V_PB0}, 0x7f800000",
        ]
    tail += [f"s_add_u32 s{S_U}, s{S_U}, 1"]
    for k, x in enumerate(tail):
        fill[70 + (k * 2) // len(tail)].append(x)

    L.extend(top_hook)
    for f in range(72):
        sub, s = divmod(f, 36)
        acc = V_A0 if sub == 0 else V_A1
        if s == 0:
            if sub == 1:
                L.append(f"s_cmp_eq_u32 s{S_U}, {n_full}")
                L.append(f"s_cbranch_scc1 {pfx}_single_exit")
            if has_bias:
                if sub == 1:
                    wait("b1")
                bf = V_B0 if sub == 0 else V_B1
                L.append(f"v_mfma_f32_32x32x16_bf16 v[{acc}:{acc+15}], v[{bf}:{bf+3}], v[{V_ONE}:{V_ONE+3}], 0")
        if f % 2 == 0:
            L.append("s_waitcnt lgkmcnt(6)")
        w = V_W + 4 * (f % 6)
        x = V_X + 4 * s
        c = "0" if (s == 0 and not has_bias) else f"v[{acc}:{acc+15}]"
        L.append(f"v_mfma_f32_32x32x16_bf16 v[{acc}:{acc+15}], v[{w}:{w+3}], v[{x}:{x+3}], {c}")
        nf = (f + 5) % 72
        if nf in (0, 12, 24):
            wait(("dma", nf // 12))
            if soft:
                L.extend(soft_barrier(pfx))
            else:
                L.append("s_barrier")
        L.extend(frag_reads(nf, native))
        for x_ in fill[f]:
            put(x_)
    return L


def emit_gemm_loop(a, pfx, native, has_bias, epi_kind, n_full, next_st_expr, top_hook, soft=False, kid=0, nw=4):
    vm = VM()
    gemm_body(pfx, native, has_bias, epi_kind, vm, n_full, next_st_expr, top_hook, soft)
    b1 = gemm_body(pfx, native, has_bias, epi_kind, vm, n_full, next_st_expr, top_hook, soft)
    b2 = gemm_body(pfx, native, has_bias, epi_kind, vm, n_full, next_st_expr, top_hook, soft)
    assert b1 == b2, "loop body not in steady state"
    probs = check_hazards(b1 + b2, pfx + "-loop")
    for p in probs:
        print(p, file=sys.stderr)
    for f in range(5):
        a.extend(frag_reads(f, native))
    stamp(a, 3)
    a.label(f"{pfx}_loop")
    a.extend(uniq_labels(b1))
    a(f"s_cmp_lt_u32 s{S_U}, {n_full}")
    a(f"s_cbranch_scc1 {pfx}_loop")
    a(f"s_cmp_lg_u32 s{S_SINGLE}, 0")
    a(f"s_cbranch_scc1 {pfx}_loop")
    stamp(a, 4)
    a("s_nop 7")
    a("s_nop 3")
    a.extend(plain(epilogue(epi_kind, V_A1, V_PA1, V_PB1, S_ST1)))
    diag_dump(a, kid, nw, s_wave=(39 if nw == 8 else 40))
    a("s_endpgm")


def gen_k1():
    a = Asm()
    kernel_header(a, "k1_kernel")
    a("s_cmp_ge_u32 s2, 256")
    a("s_cbranch_scc1 k1_end")
    stamp(a, 0)
    stamp_rt(a, 13)
    a("s_load_dwordx4 s[24:27], s[0:1], 0")
    a("s_load_dwordx4 s[28:31], s[0:1], 16")
    a("s_load_dwordx4 s[32:35], s[0:1], 48")
    a("s_load_dwordx2 s[36:37], s[0:1], 96")
    emit_lane_consts(a, native=False)
    a("s_and_b32 s41, s2, 3")
    a("s_lshl_b32 s41, s41, 2")
    a("s_bfe_u32 s60, s2, 0x20003")
    a("s_add_u32 s41, s41, s60")
    a("s_bfe_u32 s42, s2, 0x10002")
    a("s_lshl_b32 s42, s42, 3")
    a("s_lshr_b32 s60, s2, 5")
    a("s_add_u32 s42, s42, s60")
    a("s_lshl_b32 s43, s42, 2")
    a(f"s_add_u32 s43, s43, s{S_WAVE}")
    a("s_waitcnt lgkmcnt(0)")
    srd(a, 4, 24, X_BYTES)
    srd(a, S_WS, 36, WS_BYTES)
    srd(a, S_B, 34, 4608 * 2)
    a(f"v_and_b32 v{V_TMP}, 31, v{V_L}")
    a(f"v_mul_u32_u24 v{V_TMP}, 1152, v{V_TMP}")
    a(f"v_lshrrev_b32 v{V_TMP+1}, 5, v{V_L}")
    a(f"v_lshl_add_u32 v15, v{V_TMP+1}, 4, v{V_TMP}")
    a("s_mul_i32 s60, s43, 36864")
    for s in range(36):
        a(f"buffer_load_dwordx4 v[{V_X+4*s}:{V_X+4*s+3}], v15, s[4:7], s60 offen offset:{32*s}")
    a("s_lshl_b32 s60, s41, 2")
    a("s_sub_u32 s60, s60, 1")
    a("s_mul_i32 s61, s41, 5")
    a("s_sub_u32 s61, s61, 9")
    a("s_cmp_lt_u32 s41, 9")
    a("s_cselect_b32 s48, s60, s61")
    a("s_cselect_b32 s8, s26, s32")
    a("s_cselect_b32 s9, s27, s33")
    a(f"s_mov_b32 s10, {576*4608*2}")
    a(f"s_cselect_b32 s10, {576*576*2}, s10")
    a("s_mov_b32 s11, 0x00020000")
    a("s_mov_b32 s49, 9216")
    a("s_cselect_b32 s49, 1152, s49")
    a("s_cselect_b32 s63, s41, s48")
    a("s_lshl_b32 s60, s63, 2")
    a("s_add_u32 s61, s60, 36")
    a("s_cmp_lt_u32 s41, 9")
    a("s_cselect_b32 s60, s60, s61")
    a("s_mul_i32 s56, s43, 324")
    a("s_add_u32 s60, s60, s56")
    a(f"s_lshl_b32 s{S_ST0}, s60, 10")
    a(f"s_mov_b32 s{S_ST1}, {OOB}")
    emit_dma_voffsets(a, 49)
    a(f"s_mul_i32 s60, s{S_WAVE}, 48")
    a("s_mul_i32 s60, s60, s49")
    a("s_lshl_b32 s61, s63, 7")
    a(f"s_add_u32 s{S_DOFF}, s60, s61")
    a(f"s_mov_b32 s{S_REG}, 0")
    a(f"s_mov_b32 s{S_REGW}, s{S_W6144}")
    for g in dma_groups():
        a.extend(plain(g))
    a(f"v_and_b32 v{V_BOFF}, 31, v{V_L}")
    a(f"v_lshlrev_b32 v{V_BOFF}, 1, v{V_BOFF}")
    a("s_lshl_b32 s60, s48, 7")
    a("s_add_u32 s61, s60, 64")
    a("s_cmp_lt_u32 s41, 9")
    a(f"s_cselect_b32 s62, {OOB}, s60")
    a(f"s_cselect_b32 s{S_BO1}, {OOB}, s61")
    a(f"s_add_u32 s{S_BO0}, s60, 128")
    a(f"buffer_load_ushort v{V_B0}, v{V_BOFF}, s[{S_B}:{S_B+3}], s62 offen")
    for r in (V_B0 + 1, V_B0 + 2, V_B0 + 3, V_B1 + 1, V_B1 + 2, V_B1 + 3, V_ONE + 1, V_ONE + 2, V_ONE + 3):
        a(f"v_mov_b32 v{r}, 0")
    a(f"v_mov_b32 v{V_TMP}, 0x3f80")
    a(f"v_cmp_gt_u32 vcc, 32, v{V_L}")
    a("s_nop 1")
    a(f"v_cndmask_b32 v{V_ONE}, 0, v{V_TMP}, vcc")
    a("s_cmp_lt_u32 s41, 9")
    a(f"s_cselect_b32 s60, {f32(QSCALE)}, 0")
    a("s_cselect_b32 s61, s60, 0x7f800000")
    a(f"v_mov_b32 v{V_PA0}, s60")
    a(f"v_mov_b32 v{V_PB0}, s61")
    a(f"v_mov_b32 v{V_PA1}, 0")
    a(f"v_mov_b32 v{V_PB1}, 0")
    srd(a, S_W, 32, 576 * 4608 * 2)
    a("s_mov_b32 s49, 9216")
    emit_dma_voffsets(a, 49)
    a(f"s_mul_i32 s60, s{S_WAVE}, {48*9216}")
    a("s_add_u32 s61, s48, 1")
    a("s_lshl_b32 s61, s61, 7")
    a(f"s_add_u32 s{S_DOFF}, s60, s61")
    a(f"s_mov_b32 s{S_REG}, {REGION}")
    a(f"s_add_u32 s{S_REGW}, s{S_REG}, s{S_W6144}")
    a(f"s_mov_b32 s{S_U}, 0")
    a(f"s_mov_b32 s{S_SINGLE}, 0")
    a("s_cmp_eq_u32 s41, 9")
    a(f"s_cselect_b32 s{S_SINGLE}, 1, s{S_SINGLE}")
    a("s_cmp_eq_u32 s41, 10")
    a(f"s_cselect_b32 s{S_SINGLE}, 1, s{S_SINGLE}")
    a("s_cmp_eq_u32 s41, 11")
    a(f"s_cselect_b32 s{S_SINGLE}, 2, s{S_SINGLE}")
    a("s_cmp_eq_u32 s41, 12")
    a(f"s_cselect_b32 s{S_SINGLE}, 3, s{S_SINGLE}")
    a("s_add_u32 s60, s48, 1")
    a("s_lshl_b32 s60, s60, 2")
    a("s_add_u32 s60, s60, 36")
    a("s_add_u32 s60, s60, s56")
    a("s_lshl_b32 s52, s60, 10")
    stamp(a, 1)
    S0, Q0 = V_T, V_T + 4
    for i in range(8):
        a(f"v_mov_b32 v{V_T+i}, 0")
    a(f"v_mov_b32 v{V_T+8}, 0x3f803f80")
    for s in range(36):
        if s % 4 == 0:
            a(f"s_waitcnt vmcnt({19 + 36 - (s + 4)})")
        for d in range(4):
            r = V_X + 4 * s + d
            a(f"v_dot2_f32_bf16 v{S0+d}, v{r}, v{V_T+8}, v{S0+d}")
            a(f"v_dot2_f32_bf16 v{Q0+d}, v{r}, v{r}, v{Q0+d}")
    a("s_nop 2")
    a(f"v_add_f32 v{S0}, v{S0}, v{S0+1}")
    a(f"v_add_f32 v{S0+2}, v{S0+2}, v{S0+3}")
    a(f"v_add_f32 v{Q0}, v{Q0}, v{Q0+1}")
    a(f"v_add_f32 v{Q0+2}, v{Q0+2}, v{Q0+3}")
    a(f"v_add_f32 v{S0}, v{S0}, v{S0+2}")
    a(f"v_add_f32 v{Q0}, v{Q0}, v{Q0+2}")
    a(f"v_mov_b32 v{S0+1}, v{S0}")
    a(f"v_mov_b32 v{Q0+1}, v{Q0}")
    a("s_nop 1")
    a(f"v_permlane32_swap_b32 v{S0}, v{S0+1}")
    a(f"v_permlane32_swap_b32 v{Q0}, v{Q0+1}")
    a("s_nop 1")
    a(f"v_add_f32 v{S0}, v{S0}, v{S0+1}")
    a(f"v_add_f32 v{Q0}, v{Q0}, v{Q0+1}")
    a(f"v_mul_f32 v{S0}, {f32(1/576)}, v{S0}")
    a(f"v_mul_f32 v{Q0}, {f32(1/576)}, v{Q0}")
    a(f"v_fma_f32 v{Q0}, -v{S0}, v{S0}, v{Q0}")
    a(f"v_max_f32 v{Q0}, 0, v{Q0}")
    a(f"v_cvt_pk_bf16_f32 v{S0+1}, v{S0}, v{Q0}")
    a(f"v_lshlrev_b32 v{S0}, 16, v{S0+1}")
    a(f"v_and_b32 v{Q0}, 0xffff0000, v{S0+1}")
    a(f"v_add_f32 v{Q0}, {f32(1e-5)}, v{Q0}")
    a(f"v_cvt_pk_bf16_f32 v{Q0}, v{Q0}, v{Q0}")
    a(f"v_and_b32 v{Q0}, 0xffff0000, v{Q0}")
    a(f"v_sqrt_f32 v{Q0}, v{Q0}")
    a("s_nop 0")
    a(f"v_cvt_pk_bf16_f32 v{Q0}, v{Q0}, v{Q0}")
    a(f"v_and_b32 v{Q0}, 0xffff0000, v{Q0}")
    a(f"v_rcp_f32 v{Q0}, v{Q0}")
    a("s_nop 0")
    a(f"v_mul_f32 v{Q0+2}, v{S0}, v{Q0}")
    a(f"v_sub_f32 v{Q0+2}, 0, v{Q0+2}")
    a(f"v_mov_b32 v{Q0+1}, v{Q0}")
    a(f"v_mov_b32 v{Q0+3}, v{Q0+2}")
    stamp(a, 2)
    for i in range(144):
        r = V_X + i
        t = V_T + 8 + 2 * (i % 4)
        a(f"v_lshlrev_b32 v{t}, 16, v{r}")
        a(f"v_and_b32 v{t+1}, 0xffff0000, v{r}")
        a(f"v_pk_fma_f32 v[{t}:{t+1}], v[{t}:{t+1}], v[{Q0}:{Q0+1}], v[{Q0+2}:{Q0+3}]")
        a(f"v_cvt_pk_bf16_f32 v{r}, v{t}, v{t+1}")
    stamp(a, 5)
    a("s_waitcnt vmcnt(0)")
    a("s_barrier")
    top = [f"s_cmp_ge_u32 s{S_U}, 4", "s_cbranch_scc1 k1_setup", "k1_setup_done:"]
    nxt = [f"s_mov_b32 s{S_ST0}, s52", "s_add_u32 s52, s52, 4096"]
    emit_gemm_loop(a, "k1", False, True, "act", 5, nxt, top)
    a.label("k1_setup")
    a(f"s_mov_b32 s{S_DOFF}, {OOB}")
    a(f"s_mov_b32 s{S_BO0}, {OOB}")
    a(f"s_cmp_eq_u32 s{S_U}, 5")
    a("s_cbranch_scc1 k1_setup_done")
    a(f"s_cmp_eq_u32 s{S_SINGLE}, 0")
    a("s_cbranch_scc1 k1_setup_done")
    a(f"s_cmp_eq_u32 s{S_SINGLE}, 1")
    a("s_cbranch_scc0 k1_setup_kv")
    a("s_add_u32 s60, s41, 133")
    a("s_lshl_b32 s61, s60, 6")
    a(f"s_mov_b32 s{S_BO0}, s61")
    a(f"s_mul_i32 s62, s{S_WAVE}, {48*9216}")
    a(f"s_add_u32 s{S_DOFF}, s62, s61")
    a("s_lshl_b32 s60, s60, 1")
    a("s_add_u32 s60, s60, 36")
    a("s_add_u32 s60, s60, s56")
    a("s_lshl_b32 s52, s60, 10")
    a("s_branch k1_setup_done")
    a.label("k1_setup_kv")
    a(f"s_cmp_eq_u32 s{S_SINGLE}, 2")
    a("s_cselect_b32 s60, s28, s30")
    a("s_cselect_b32 s61, s29, s31")
    a("s_sub_u32 s8, s60, 2048")
    a("s_subb_u32 s9, s61, 0")
    a(f"s_mov_b32 s10, {576*36 + 2048}")
    a("s_mov_b32 s11, 0x00020000")
    a("s_mov_b32 s49, 36")
    emit_dma_voffsets(a, 49, bias=2048)
    a(f"s_mul_i32 s{S_DOFF}, s{S_WAVE}, {48*36}")
    a("s_branch k1_setup_done")
    a.label("k1_single_exit")
    stamp(a, 4)
    a("s_nop 7")
    a("s_nop 3")
    a(f"s_cmp_eq_u32 s{S_SINGLE}, 1")
    a("s_cbranch_scc0 k1_exit_kv")
    a.extend(plain(epilogue("act", V_A0, V_PA0, V_PB0, S_ST0)))
    diag_dump(a, 0, 4)
    a("s_endpgm")
    a.label("k1_exit_kv")
    a(f"s_mul_i32 s60, s43, {KV_TILE}")
    a(f"s_add_u32 s60, s60, {WS_KV}")
    for i in range(5):
        a(f"v_cvt_pk_bf16_f32 v{V_K+i}, v{V_A0+2*i}, v{V_A0+2*i+1}")
    a(f"s_cmp_eq_u32 s{S_SINGLE}, 2")
    a("s_cbranch_scc0 k1_exit_v")
    a(f"buffer_store_dwordx4 v[{V_K}:{V_K+3}], v{V_ST}, s[{S_WS}:{S_WS+3}], s60 offen")
    a(f"v_lshlrev_b32 v{V_TMP}, 2, v{V_L}")
    a(f"v_cmp_gt_u32 vcc, 32, v{V_L}")
    a("s_and_saveexec_b64 s[64:65], vcc")
    a(f"buffer_store_dword v{V_K+4}, v{V_TMP}, s[{S_WS}:{S_WS+3}], s60 offen offset:1024")
    a("s_endpgm")
    a.label("k1_exit_v")
    t0, t1, t2, t3 = V_TMP, V_TMP + 1, V_TMP + 2, V_TMP + 3
    a(f"v_bfe_u32 v{t0}, v{V_L}, 4, 1")
    a(f"v_bfe_u32 v{t1}, v{V_L}, 2, 1")
    a(f"v_lshl_add_u32 v{t0}, v{t0}, 1, v{t1}")
    a(f"v_mul_u32_u24 v{t0}, 304, v{t0}")
    a(f"v_bfe_u32 v{t1}, v{V_L}, 3, 1")
    a(f"v_and_b32 v{t2}, 3, v{V_L}")
    a(f"v_lshl_add_u32 v{t1}, v{t1}, 2, v{t2}")
    a(f"v_lshl_add_u32 v{t0}, v{t1}, 1, v{t0}")
    a(f"v_lshrrev_b32 v{t1}, 5, v{V_L}")
    a(f"v_lshl_add_u32 v{t0}, v{t1}, 6, v{t0}")
    for i in range(4):
        d = ((2 * i) & 3) + 8 * ((2 * i) >> 2)
        a(f"buffer_store_short v{V_K+i}, v{t0}, s[{S_WS}:{S_WS+3}], s60 offen offset:{1152 + d*16}")
        a(f"buffer_store_short_d16_hi v{V_K+i}, v{t0}, s[{S_WS}:{S_WS+3}], s60 offen offset:{1152 + (d+1)*16}")
    a(f"v_mov_b32 v{t3}, 0x3f80")
    a(f"v_cmp_gt_u32 vcc, 32, v{V_L}")
    a("s_and_saveexec_b64 s[64:65], vcc")
    a(f"buffer_store_short v{V_K+4}, v{t0}, s[{S_WS}:{S_WS+3}], s60 offen offset:{1152 + 16*16}")
    a(f"buffer_store_short_d16_hi v{V_K+4}, v{t0}, s[{S_WS}:{S_WS+3}], s60 offen offset:{1152 + 17*16}")
    a(f"buffer_store_short v{t3}, v{t0}, s[{S_WS}:{S_WS+3}], s60 offen offset:{1152 + 18*16}")
    a.label("k1_end")
    a("s_endpgm")
    return a


def gen_g2():
    a = Asm()
    kernel_header(a, "g2_kernel")
    a("s_cmp_ge_u32 s2, 256")
    a("s_cbranch_scc1 g2_end")
    stamp(a, 0)
    stamp_rt(a, 13)
    a("s_load_dwordx2 s[32:33], s[0:1], 64")
    a("s_load_dwordx2 s[36:37], s[0:1], 96")
    emit_lane_consts(a, native=True)
    a("s_and_b32 s41, s2, 7")
    a("s_bfe_u32 s48, s2, 0x10003")
    a("s_lshr_b32 s42, s2, 4")
    a("s_lshl_b32 s43, s42, 2")
    a(f"s_add_u32 s43, s43, s{S_WAVE}")
    a("s_waitcnt lgkmcnt(0)")
    srd(a, S_WS, 36, WS_BYTES)
    srd(a, S_W, 32, 4608 * 576 * 2)
    a("s_mov_b32 s49, 1152")
    emit_dma_voffsets(a, 49)
    a("s_mul_i32 s60, s41, 576")
    a(f"s_mul_i32 s61, s{S_WAVE}, 48")
    a("s_add_u32 s60, s60, s61")
    a("s_mul_i32 s56, s60, 1152")
    a("s_mul_i32 s61, s48, 640")
    a(f"s_add_u32 s{S_DOFF}, s56, s61")
    a(f"s_mov_b32 s{S_REG}, 0")
    a(f"s_mov_b32 s{S_REGW}, s{S_W6144}")
    for g in dma_groups():
        a.extend(plain(g))
    a("s_mul_i32 s60, s43, 324")
    a("s_mul_i32 s61, s41, 36")
    a("s_add_u32 s60, s60, s61")
    a("s_add_u32 s60, s60, 36")
    a("s_lshl_b32 s60, s60, 10")
    for s in range(36):
        if s and s % 4 == 0:
            a("s_add_u32 s60, s60, 4096")
        a(f"buffer_load_dwordx4 v[{V_X+4*s}:{V_X+4*s+3}], v{V_ST}, s[{S_WS}:{S_WS+3}], s60 offen offset:{1024*(s%4)}")
    a(f"s_mul_i32 s60, s41, {P_SLICE}")
    a("s_mul_i32 s61, s43, 36864")
    a("s_add_u32 s60, s60, s61")
    a(f"s_add_u32 s63, s60, {WS_P}")
    a("s_mul_i32 s61, s48, 20480")
    a(f"s_add_u32 s{S_ST0}, s63, s61")
    a(f"s_add_u32 s52, s{S_ST0}, 4096")
    a(f"s_mov_b32 s{S_ST1}, {OOB}")
    a(f"s_add_u32 s{S_DOFF}, s{S_DOFF}, 128")
    a(f"s_mov_b32 s{S_REG}, {REGION}")
    a(f"s_add_u32 s{S_REGW}, s{S_REG}, s{S_W6144}")
    a(f"s_mov_b32 s{S_U}, 0")
    a(f"s_mov_b32 s{S_SINGLE}, 1")
    stamp(a, 1)
    a("s_waitcnt vmcnt(0)")
    a("s_barrier")
    top = [f"s_cmp_ge_u32 s{S_U}, 3", "s_cbranch_scc1 g2_setup", "g2_setup_done:"]
    nxt = [f"s_mov_b32 s{S_ST0}, s52", "s_add_u32 s52, s52, 4096"]
    emit_gemm_loop(a, "g2", True, False, "cvt", 4, nxt, top)
    a.label("g2_setup")
    a(f"s_mov_b32 s{S_DOFF}, {OOB}")
    a(f"s_cmp_eq_u32 s{S_U}, 4")
    a("s_cbranch_scc1 g2_setup_done")
    a("s_add_u32 s60, s48, 8")
    a("s_lshl_b32 s61, s60, 6")
    a(f"s_add_u32 s{S_DOFF}, s56, s61")
    a("s_lshl_b32 s60, s60, 11")
    a("s_add_u32 s52, s63, s60")
    a("s_branch g2_setup_done")
    a.label("g2_single_exit")
    stamp(a, 4)
    a("s_nop 7")
    a("s_nop 3")
    a.extend(plain(epilogue("cvt", V_A0, V_PA0, V_PB0, S_ST0)))
    diag_dump(a, 2, 4)
    a.label("g2_end")
    a("s_endpgm")
    return a


def gen_attn():
    a = Asm()
    kernel_header(a, "attn_kernel")
    L, T0, T1, T2, T3 = 1, 2, 3, 4, 5
    KAD, K2AD, VAD = 6, 7, 8
    QA, QB = 12, 16
    KA = [20, 24]
    KB = [28, 32]
    VA = [36, 44]
    P = 52
    S = [64, 80]
    C = 96
    O = 112
    NV = 128
    UNR = 8
    a("s_cmp_ge_u32 s2, 256")
    a("s_cbranch_scc1 at_end")
    stamp(a, 0)
    stamp_rt(a, 13)
    a("s_load_dwordx2 s[36:37], s[0:1], 96")
    a(f"v_and_b32 v{L}, 63, v0")
    a(f"v_lshrrev_b32 v{T0}, 6, v0")
    a("s_nop 0")
    a(f"v_readfirstlane_b32 s40, v{T0}")
    a("s_lshr_b32 s43, s2, 2")
    a("s_and_b32 s41, s2, 3")
    a("s_lshl_b32 s41, s41, 3")
    a("s_add_u32 s41, s41, s40")
    a("s_waitcnt lgkmcnt(0)")
    srd(a, 12, 36, WS_BYTES)
    a(f"v_lshlrev_b32 v{KAD}, 4, v{L}")
    a("s_lshl_b32 s44, s40, 10")
    a(f"s_add_u32 s45, s44, {WS_KV}")
    for i in range(19):
        a(f"s_add_u32 m0, s44, {8192*i}")
        a(f"s_add_u32 s46, s45, {8192*i}")
        a(f"buffer_load_dwordx4 v{KAD}, s[12:15], s46 offen lds")
    a("s_mul_i32 s47, s41, 18")
    a(f"s_mul_i32 s48, s43, {Y_MSUB}")
    a(f"v_lshrrev_b32 v{T0}, 5, v{L}")
    a(f"v_lshlrev_b32 v{T0}, 2, v{T0}")
    a(f"v_and_b32 v9, 31, v{L}")
    a("v_lshlrev_b32 v9, 4, v9")
    for t, dim in enumerate((0, 2, 8, 10, 16)):
        dst = QA + t
        if t < 4:
            a(f"v_add_u32 v{T1}, s47, v{T0}")
        else:
            a(f"v_mov_b32 v{T1}, s47")
        if dim:
            a(f"v_add_u32 v{T1}, {dim}, v{T1}")
        a(f"v_lshrrev_b32 v{T2}, 4, v{T1}")
        a(f"v_lshl_add_u32 v{T2}, v{T2}, 10, v9")
        a(f"v_bfe_u32 v{T3}, v{T1}, 2, 1")
        a(f"v_lshl_add_u32 v{T2}, v{T3}, 9, v{T2}")
        a(f"v_bfe_u32 v{T3}, v{T1}, 3, 1")
        a(f"v_lshl_add_u32 v{T2}, v{T3}, 3, v{T2}")
        a(f"v_and_b32 v{T3}, 3, v{T1}")
        a(f"v_lshl_add_u32 v{T2}, v{T3}, 1, v{T2}")
        a(f"buffer_load_dword v{dst}, v{T2}, s[12:15], s48 offen")
    a(f"v_and_b32 v{T0}, 31, v{L}")
    a(f"v_lshlrev_b32 v{K2AD}, 2, v{T0}")
    a(f"v_add_u32 v{K2AD}, 1024, v{K2AD}")
    a(f"v_min_u32 v{T1}, 18, v{T0}")
    a(f"v_subrev_u32 v{T2}, 20, v{T0}")
    a(f"v_cmp_gt_u32 vcc, 8, v{T2}")
    a("s_nop 1")
    a(f"v_cndmask_b32 v{T1}, v{T1}, 0, vcc")
    a(f"v_lshrrev_b32 v{T2}, 5, v{L}")
    a(f"v_mul_u32_u24 v{T2}, 19, v{T2}")
    a(f"v_add_u32 v{T1}, v{T1}, v{T2}")
    a(f"v_lshlrev_b32 v{T1}, 4, v{T1}")
    a(f"v_add_u32 v{VAD}, 1152, v{T1}")
    for r in (QB + 1, QB + 2, QB + 3, KB[0] + 1, KB[0] + 2, KB[0] + 3, KB[1] + 1, KB[1] + 2, KB[1] + 3):
        a(f"v_mov_b32 v{r}, 0")
    stamp(a, 1)
    a("s_waitcnt vmcnt(0)")
    stamp(a, 2)
    a(f"v_cmp_gt_u32 vcc, 32, v{L}")
    a("s_nop 1")
    a(f"v_cndmask_b32 v{QB}, 0, v{QB}, vcc")
    a("s_mov_b32 s50, 0")
    a("s_barrier")

    def kread(b, off):
        return [f"ds_read_b128 v[{KA[b]}:{KA[b]+3}], v{KAD} offset:{off}",
                f"ds_read_b32 v{KB[b]}, v{K2AD} offset:{off}"]

    def vread(b, off):
        return [f"ds_read_b128 v[{VA[b]}:{VA[b]+3}], v{VAD} offset:{off}",
                f"ds_read_b128 v[{VA[b]+4}:{VA[b]+7}], v{VAD} offset:{off+608}"]

    def qk(b, sb, c):
        s = S[sb]
        return [f"v_mfma_f32_32x32x16_bf16 v[{s}:{s+15}], v[{KA[b]}:{KA[b]+3}], v[{QA}:{QA+3}], {c}",
                f"v_mfma_f32_32x32x16_bf16 v[{s}:{s+15}], v[{KB[b]}:{KB[b]+3}], v[{QB}:{QB+3}], v[{s}:{s+15}]"]

    def rowmax(src, dst):
        out = [f"v_max3_f32 v{dst}, v{src}, v{src+1}, v{src+2}"]
        for i in range(3, 15, 2):
            out.append(f"v_max3_f32 v{dst}, v{dst}, v{src+i}, v{src+i+1}")
        out.append(f"v_max_f32 v{dst}, v{dst}, v{src+15}")
        return out

    a.extend(kread(0, 0))
    a("s_waitcnt lgkmcnt(0)")
    a.extend(qk(0, 0, "0"))
    a("s_nop 7")
    a("s_nop 3")
    a.extend(rowmax(S[0], T0))
    a(f"v_mov_b32 v{T1}, v{T0}")
    a("s_nop 1")
    a(f"v_permlane32_swap_b32 v{T0}, v{T1}")
    a("s_nop 1")
    a(f"v_max_f32 v{T0}, v{T0}, v{T1}")
    a.label("at_start")
    a(f"v_add_f32 v{T0}, {f32(64.0)}, v{T0}")
    a(f"v_sub_f32 v{T0}, 0, v{T0}")
    for r in range(16):
        a(f"v_mov_b32 v{C+r}, v{T0}")
        a(f"v_mov_b32 v{O+r}, 0")
    a.extend(kread(0, 0))
    a.extend(kread(1, KV_TILE))
    a.extend(vread(0, 0))
    a("s_waitcnt lgkmcnt(4)")
    a.extend(qk(0, 0, f"v[{C}:{C+15}]"))
    a("s_mov_b32 s51, 0")
    a("s_nop 7")
    a("s_nop 3")
    body = []
    for t in range(UNR):
        cur, nx = t % 2, (t + 1) % 2
        s = S[cur]
        q1, q2 = qk(nx, nx, f"v[{C}:{C+15}]")
        ex = lambda r: f"v_exp_f32 v{s+r}, v{s+r}"
        cv = lambda i: f"v_cvt_pk_bf16_f32 v{P+i}, v{s+2*i}, v{s+2*i+1}"
        pv = lambda h: f"v_mfma_f32_32x32x16_bf16 v[{O}:{O+15}], v[{VA[cur]+4*h}:{VA[cur]+4*h+3}], v[{P+4*h}:{P+4*h+3}], v[{O}:{O+15}]"
        body.append("s_waitcnt lgkmcnt(2)")
        body.append(q1)
        body += [ex(0), ex(1), ex(2), ex(3)]
        body.append(q2)
        body += kread(cur, (t + 2) * KV_TILE)
        body += [ex(4), ex(5), cv(0), ex(6), ex(7), cv(1), cv(2), ex(8), cv(3), ex(9), ex(10)]
        body.append("s_waitcnt lgkmcnt(2)")
        body.append(pv(0))
        body += vread(nx, (t + 1) * KV_TILE)
        body += [ex(11), cv(4), ex(12), ex(13), cv(5), ex(14), ex(15), cv(6), "s_nop 0", cv(7), "s_nop 1"]
        body.append(pv(1))
    for p in check_hazards(body + body, "attn-loop"):
        print(p, file=sys.stderr)
    stamp(a, 3)
    a.label("at_loop")
    a.extend(body)
    a(f"v_add_u32 v{KAD}, {UNR*KV_TILE}, v{KAD}")
    a(f"v_add_u32 v{K2AD}, {UNR*KV_TILE}, v{K2AD}")
    a(f"v_add_u32 v{VAD}, {UNR*KV_TILE}, v{VAD}")
    a("s_add_u32 s51, s51, 1")
    a("s_nop 7")
    a(f"v_cmp_nlt_f32 vcc, v{O+10}, v10")
    a("s_cmp_eq_u32 s51, 8")
    a("s_cbranch_scc1 at_recentre")
    a("s_cmp_eq_u32 vcc_lo, 0")
    a("s_cbranch_scc1 at_loop")
    a.label("at_recentre")
    a(f"v_frexp_exp_i32_f32 v{T0}, v{O+10}")
    a(f"v_add_u32 v{T0}, 64, v{T0}")
    a(f"v_mov_b32 v{T1}, v{T0}")
    a("s_nop 1")
    a(f"v_permlane32_swap_b32 v{T0}, v{T1}")
    a("s_nop 1")
    a(f"v_sub_u32 v{T1}, 0, v{T0}")
    a(f"v_cvt_f32_i32 v{T2}, v{T0}")
    for r in range(11):
        a(f"v_ldexp_f32 v{O+r}, v{O+r}, v{T1}")
    for r in range(16):
        a(f"v_sub_f32 v{C+r}, v{C+r}, v{T2}")
        a(f"v_sub_f32 v{S[0]+r}, v{S[0]+r}, v{T2}")
    a("s_cmp_lt_u32 s51, 8")
    a("s_cbranch_scc1 at_loop")
    stamp(a, 4)
    a("s_waitcnt lgkmcnt(0)")
    a(f"v_subrev_u32 v{KAD}, {64*KV_TILE}, v{KAD}")
    a(f"v_subrev_u32 v{K2AD}, {64*KV_TILE}, v{K2AD}")
    a(f"v_subrev_u32 v{VAD}, {64*KV_TILE}, v{VAD}")
    a(f"v_add_f32 v{T0}, abs(v{O}), abs(v{O+1})")
    for r in range(2, 11):
        a(f"v_add_f32 v{T0}, v{T0}, abs(v{O+r})")
    a(f"v_mov_b32 v{T1}, 0x7f800000")
    a(f"v_cmp_nlt_f32 vcc, v{T0}, v{T1}")
    a("s_cmp_lg_u32 s50, 0")
    a("s_cbranch_scc1 at_store")
    a("s_cmp_eq_u64 vcc, 0")
    a("s_cbranch_scc1 at_store")
    a("s_mov_b32 s50, 1")
    a(f"v_mov_b32 v{T0}, 0xff800000")
    a("s_mov_b32 s51, 0")
    a(f"v_mov_b32 v{T2}, v{KAD}")
    a(f"v_mov_b32 v{T3}, v{K2AD}")
    a.label("at_fb_loop")
    a(f"ds_read_b128 v[{KA[0]}:{KA[0]+3}], v{T2}")
    a(f"ds_read_b32 v{KB[0]}, v{T3}")
    a("s_waitcnt lgkmcnt(0)")
    a.extend(qk(0, 0, "0"))
    a(f"v_add_u32 v{T2}, {KV_TILE}, v{T2}")
    a(f"v_add_u32 v{T3}, {KV_TILE}, v{T3}")
    a("s_nop 7")
    a("s_nop 3")
    a.extend(rowmax(S[0], T1))
    a(f"v_max_f32 v{T0}, v{T0}, v{T1}")
    a("s_add_u32 s51, s51, 1")
    a("s_cmp_lt_u32 s51, 64")
    a("s_cbranch_scc1 at_fb_loop")
    a(f"v_mov_b32 v{T1}, v{T0}")
    a("s_nop 1")
    a(f"v_permlane32_swap_b32 v{T0}, v{T1}")
    a("s_nop 1")
    a(f"v_max_f32 v{T0}, v{T0}, v{T1}")
    a("s_branch at_start")
    a.label("at_store")
    a(f"v_mov_b32 v{T0}, v{O+10}")
    a(f"v_mov_b32 v{T1}, v{O+10}")
    a("s_nop 1")
    a(f"v_permlane32_swap_b32 v{T0}, v{T1}")
    a("s_nop 1")
    a(f"v_rcp_f32 v{T0}, v{T0}")
    a("s_nop 0")
    for r in range(10):
        a(f"v_mul_f32 v{O+r}, v{O+r}, v{T0}")
    for i in range(5):
        a(f"v_cvt_pk_bf16_f32 v{P+i}, v{O+2*i}, v{O+2*i+1}")
    a("s_mul_i32 s44, s43, 36")
    a("s_add_u32 s45, s44, s41")
    a("s_lshl_b32 s45, s45, 10")
    a(f"s_add_u32 s45, s45, {WS_O}")
    a(f"buffer_store_dwordx4 v[{P}:{P+3}], v{KAD}, s[12:15], s45 offen")
    a("s_lshr_b32 s45, s41, 3")
    a("s_add_u32 s45, s45, s44")
    a("s_add_u32 s45, s45, 32")
    a("s_lshl_b32 s45, s45, 10")
    a(f"s_add_u32 s45, s45, {WS_O}")
    a("s_bfe_u32 s46, s41, 0x10001")
    a("s_lshl_b32 s46, s46, 9")
    a("s_add_u32 s45, s45, s46")
    a("s_and_b32 s46, s41, 1")
    a("s_lshl_b32 s46, s46, 2")
    a("s_add_u32 s45, s45, s46")
    a("s_bfe_u32 s46, s41, 0x10002")
    a("s_lshl_b32 s46, s46, 3")
    a("s_add_u32 s45, s45, s46")
    a(f"v_cmp_gt_u32 vcc, 32, v{L}")
    a("s_and_saveexec_b64 s[64:65], vcc")
    a(f"buffer_store_dword v{P+4}, v{KAD}, s[12:15], s45 offen")
    diag_dump(a, 1, 8)
    a.label("at_end")
    a("s_endpgm")
    idx = a.lines.index(f"v_lshrrev_b32 v{T0}, 6, v0")
    a.lines.insert(idx, f"v_mov_b32 v10, {f32(2.0**-16)}")
    return a, NV


def gen_k3(split4=False):
    a = Asm()
    kernel_header(a, "k3_kernel")
    PF = 56
    PF = 32
    ACC = 96
    E = 16
    XR = 24
    a("s_cmp_ge_u32 s2, 288")
    a("s_cbranch_scc1 k3_end")
    stamp(a, 0)
    stamp_rt(a, 13)
    a("s_load_dwordx2 s[24:25], s[0:1], 0")
    a("s_load_dwordx2 s[32:33], s[0:1], 32")
    a("s_load_dwordx4 s[28:31], s[0:1], 72")
    a("s_load_dwordx2 s[36:37], s[0:1], 96")
    emit_lane_consts(a, native=True)
    a("s_and_b32 s42, s2, 31")
    a("s_lshr_b32 s41, s2, 5")
    a("s_lshl_b32 s43, s42, 1")
    a(f"s_lshr_b32 s60, s{S_WAVE}, 1")
    a("s_add_u32 s43, s43, s60")
    a(f"s_and_b32 s48, s{S_WAVE}, 1")
    a("s_lshl_b32 s49, s41, 1")
    a("s_add_u32 s49, s49, s48")
    a("s_waitcnt lgkmcnt(0)")
    srd(a, S_WS, 36, WS_BYTES)
    srd(a, S_W, 32, 576 * 576 * 2)
    srd(a, 4, 24, X_BYTES)
    srd(a, S_B, 28, 1152)
    srd(a, 20, 30, X_BYTES)
    l = V_L
    t0, t1, t2, t3 = 10, 11, 12, 13
    a(f"v_lshrrev_b32 v{t0}, 3, v{l}")
    a(f"v_and_b32 v{t1}, 7, v{l}")
    a(f"v_bfe_u32 v{t2}, v{l}, 4, 1")
    a(f"v_lshlrev_b32 v{t2}, 2, v{t2}")
    a(f"v_xor_b32 v{t1}, v{t1}, v{t2}")
    a(f"v_lshlrev_b32 v{t1}, 4, v{t1}")
    a(f"v_mul_u32_u24 v{t2}, 1152, v{t0}")
    a(f"v_add_u32 v{V_DOFF}, v{t2}, v{t1}")
    a(f"v_lshrrev_b32 v{t2}, 1, v{t0}")
    a(f"v_mul_u32_u24 v{t2}, 18, v{t2}")
    a(f"v_and_b32 v{t3}, 1, v{t0}")
    a(f"v_add_u32 v{t2}, v{t2}, v{t3}")
    a(f"v_mul_u32_u24 v{t2}, 1152, v{t2}")
    a(f"v_add_u32 v{V_DOFF+1}, v{t2}, v{t1}")
    a(f"s_mul_i32 s60, s{S_WAVE}, {8*18*1152}")
    a("s_lshl_b32 s61, s41, 7")
    a("s_add_u32 s60, s60, s61")
    a(f"s_lshl_b32 s62, s{S_WAVE}, 14")
    for p in range(16):
        a(f"s_add_u32 m0, s62, {1024*p}")
        a(f"s_add_u32 s63, s60, {(18*(p>>1) + 8*(p&1))*1152}")
        a(f"buffer_load_dwordx4 v{V_DOFF}, s[{S_W}:{S_W+3}], s63 offen lds")
    a(f"s_mul_i32 s60, s{S_WAVE}, {2*72*1152}")
    a("s_add_u32 s60, s60, s61")
    a(f"s_lshl_b32 s62, s{S_WAVE}, 11")
    for p in range(2):
        a(f"s_add_u32 m0, s62, {65536 + 1024*p}")
        a(f"s_add_u32 s63, s60, {(72*p + 16)*1152}")
        a(f"buffer_load_dwordx4 v{V_DOFF+1}, s[{S_W}:{S_W+3}], s63 offen lds")
    a("s_mul_i32 s60, s43, 36864")
    a(f"s_add_u32 s60, s60, {WS_O}")
    for s in range(36):
        if s and s % 4 == 0:
            a("s_add_u32 s60, s60, 4096")
        a(f"buffer_load_dwordx4 v[{V_X+4*s}:{V_X+4*s+3}], v{V_ST}, s[{S_WS}:{S_WS+3}], s60 offen offset:{1024*(s%4)}")
    a("s_mul_i32 s60, s43, 18")
    a("s_add_u32 s60, s60, s49")
    a("s_lshl_b32 s60, s60, 11")
    a(f"s_add_u32 s60, s60, {WS_P}")
    for s in range(8):
        if split4 and s == 4:
            a("s_cmp_lg_u32 s41, 8")
            a("s_cbranch_scc1 k3_l4")
        if s:
            a(f"s_add_u32 s60, s60, {P_SLICE}")
        for h in range(2):
            r = PF + 8 * s + 4 * h
            a(f"buffer_load_dwordx4 v[{r}:{r+3}], v{V_ST}, s[{S_WS}:{S_WS+3}], s60 offen offset:{1024*h}")
    a.label("k3_l4")
    a(f"v_and_b32 v{t0}, 31, v{l}")
    a(f"v_mul_u32_u24 v15, 1152, v{t0}")
    a(f"v_lshrrev_b32 v{t1}, 5, v{l}")
    a(f"v_lshl_add_u32 v15, v{t1}, 3, v15")
    a("s_mul_i32 s56, s43, 36864")
    a("s_lshl_b32 s61, s49, 6")
    a("s_add_u32 s56, s56, s61")
    for i in range(4):
        a(f"buffer_load_dwordx2 v[{XR+2*i}:{XR+2*i+1}], v15, s[4:7], s56 offen offset:{16*i}")
    a(f"v_lshlrev_b32 v14, 3, v{t1}")
    BR = 2
    a(f"v_lshlrev_b32 v{t1}, 2, v{t1}")
    a(f"v_sub_u32 v{t0}, v{t0}, v{t1}")
    a(f"v_mov_b32 v{t2}, 0x3f80")
    a(f"v_mov_b32 v{t3}, 0x3f800000")
    for aa in range(2):
        for dw in range(4):
            j0 = 2 * dw
            tgt = 16 * aa + (j0 & 3) + 8 * (j0 >> 2)
            r = E + 4 * aa + dw
            a(f"v_cmp_eq_u32 vcc, {tgt}, v{t0}")
            a(f"v_cmp_eq_u32 s[64:65], {tgt+1}, v{t0}")
            a("s_nop 1")
            a(f"v_cndmask_b32 v{r}, 0, v{t2}, vcc")
            a(f"v_cndmask_b32 v{r}, v{r}, v{t3}, s[64:65]")
    stamp(a, 1)
    a("s_waitcnt vmcnt(0)")
    stamp(a, 2)
    first = True
    for s in range(8):
        if split4 and s == 4:
            a("s_cmp_lg_u32 s41, 8")
            a("s_cbranch_scc1 k3_m4")
        for h in range(2):
            r = PF + 8 * s + 4 * h
            c = "0" if first else f"v[{ACC}:{ACC+15}]"
            first = False
            a(f"v_mfma_f32_32x32x16_bf16 v[{ACC}:{ACC+15}], v[{E+4*h}:{E+4*h+3}], v[{r}:{r+3}], {c}")
    a.label("k3_m4")
    for h in range(2):
        a(f"v_mfma_f32_32x32x16_bf16 v[{ACC}:{ACC+15}], v[{E+4*h}:{E+4*h+3}], v[{XR+4*h}:{XR+4*h+3}], v[{ACC}:{ACC+15}]")
    a("s_lshl_b32 s61, s49, 6")
    for i in range(4):
        a(f"buffer_load_dwordx2 v[{88+2*i}:{88+2*i+1}], v14, s[{S_B}:{S_B+3}], s61 offen offset:{16*i}")
    a("s_barrier")
    stamp(a, 3)
    a(f"s_cmp_eq_u32 s48, 1")
    a("s_cselect_b32 s60, 64, 0")
    a(f"v_xor_b32 v{V_RD}, s60, v{V_RD}")
    a(f"v_xor_b32 v{V_RD+1}, s60, v{V_RD+1}")
    for f in range(5):
        a.extend(frag_reads(f, True))
    for f in range(36):
        rem = min(4, 35 - f)
        a(f"s_waitcnt lgkmcnt({2*rem})")
        w = V_W + 4 * (f % 6)
        x = V_X + 4 * f
        a(f"v_mfma_f32_32x32x16_bf16 v[{ACC}:{ACC+15}], v[{w}:{w+3}], v[{x}:{x+3}], v[{ACC}:{ACC+15}]")
        if f + 5 < 36:
            a.extend(frag_reads(f + 5, True))
    a("s_waitcnt vmcnt(0)")
    for h in range(2):
        a(f"v_mfma_f32_32x32x16_bf16 v[{ACC}:{ACC+15}], v[{E+4*h}:{E+4*h+3}], v[{88+4*h}:{88+4*h+3}], v[{ACC}:{ACC+15}]")
    a("s_nop 7")
    a("s_nop 3")
    for i in range(8):
        a(f"v_cvt_pk_bf16_f32 v{56+i}, v{ACC+2*i}, v{ACC+2*i+1}")
    for i in range(4):
        a(f"buffer_store_dwordx2 v[{56+2*i}:{56+2*i+1}], v15, s[20:23], s56 offen offset:{16*i}")
    diag_dump(a, K3_KID, 4)
    a.label("k3_end")
    a("s_endpgm")
    return a


def main(out):
    k1 = gen_k1()
    at, at_nv = gen_attn()
    g2 = gen_g2()
    k3 = gen_k3()
    for nm, k in (("k1", k1), ("attn", at), ("g2", g2), ("k3", k3)):
        for p in check_hazards(k.lines, nm):
            print(p, file=sys.stderr)
    hdr = open("cdna_kernels/" + NAME + ".s.ref").read().split("; Override launch")[0]
    txt = hdr
    txt += f"; @launch kernel=k1_kernel grid=(256,1,1) block=(256,1,1) lds={2*REGION}\n"
    txt += "; @launch kernel=attn_kernel grid=(256,1,1) block=(512,1,1) lds=160768\n"
    txt += f"; @launch kernel=g2_kernel grid=(256,1,1) block=(256,1,1) lds={2*REGION}\n"
    txt += f"; @launch kernel=k3_kernel grid=(288,1,1) block=(256,1,1) lds={REGION}\n"
    txt += '.amdgcn_target "amdgcn-amd-amdhsa--gfx950"\n.text\n'
    for k in (k1, at, g2, k3):
        txt += k.text()
    txt += '.section .rodata,"a"\n'
    txt += descriptor("k1_kernel", 256)
    txt += descriptor("attn_kernel", at_nv)
    txt += descriptor("g2_kernel", 256)
    txt += descriptor("k3_kernel", 256)
    open(out, "w").write(txt)


if __name__ == "__main__":
    if "-diag" in sys.argv:
        DIAG = True
        sys.argv.remove("-diag")
    main(sys.argv[1] if len(sys.argv) > 1 else "cdna_kernels/" + NAME + ".s")
```

```python
import sys
import gen
from gen import *

OPT = {}

WSLOT = 24576
W_RING = 4 * WSLOT
KVSLOT = 20480
KV_BASE = W_RING
CNT_A = KV_BASE + 3 * KVSLOT
CNT_G = CNT_A + 4
K2_LDS = CNT_A + 64
CH_BYTES = 8 * KV_TILE


def attn_role(a, kid, nw):
    L, T0, T1, T2, T3 = 1, 2, 3, 4, 5
    KAD, K2AD, VAD, THR, GL16, CNT, ONE, CV = 6, 7, 8, 10, 11, 18, 19, 26
    QA = [12, 20]
    QB = [16, 24]
    KA = [28, 36]
    KB = [32, 40]
    VA = [44, 52]
    P = [60, 68]
    S = [80, 96]
    C = [112, 128]
    O = [144, 160]
    UNR = 8
    SK = 46
    SM = 47
    SD = 52
    SSL = 53
    STG = 54
    a("s_barrier")
    a(f"v_and_b32 v{L}, 63, v0")
    a(f"v_lshlrev_b32 v{GL16}, 4, v{L}")
    a("s_mul_i32 s44, s39, 5120")
    a(f"s_add_u32 s{SK}, s44, {WS_KV}")
    a(f"s_add_u32 s{SM}, s44, {KV_BASE}")

    def kv_dma():
        return [f"s_mov_b32 m0, s{SM}", "s_nop 0"] + \
            [f"buffer_load_dwordx4 v{GL16}, s[12:15], s{SK} offen offset:{1024*i} lds" for i in range(4)] + \
            [f"s_add_u32 m0, s{SM}, 4096", f"s_add_u32 s45, s{SK}, 4096",
             f"buffer_load_dwordx4 v{GL16}, s[12:15], s45 offen lds",
             f"s_add_u32 s{SK}, s{SK}, {CH_BYTES}"]

    a.extend(kv_dma())
    a(f"s_add_u32 s{SM}, s{SM}, {KVSLOT}")
    a(f"v_mov_b32 v{THR}, {f32(2.0**-16)}")
    a("s_and_b32 s43, s2, 7")
    a("s_lshl_b32 s43, s43, 3")
    a("s_lshr_b32 s44, s2, 5")
    a("s_add_u32 s43, s43, s44")
    a("s_bfe_u32 s41, s2, 0x20003")
    a("s_lshl_b32 s41, s41, 3")
    a("s_lshl_b32 s44, s39, 1")
    a("s_add_u32 s41, s41, s44")
    a(f"s_mul_i32 s48, s43, {Y_MSUB}")
    a(f"v_lshrrev_b32 v{T0}, 5, v{L}")
    a(f"v_lshlrev_b32 v{T0}, 2, v{T0}")
    a(f"v_and_b32 v9, 31, v{L}")
    a("v_lshlrev_b32 v9, 4, v9")
    for qi in range(2):
        a("s_mul_i32 s49, s41, 18")
        if qi:
            a("s_add_u32 s49, s49, 18")
        for t, dim in enumerate((0, 2, 8, 10, 16)):
            dst = QA[qi] + t
            if t < 4:
                a(f"v_add_u32 v{T1}, s49, v{T0}")
            else:
                a(f"v_mov_b32 v{T1}, s49")
            if dim:
                a(f"v_add_u32 v{T1}, {dim}, v{T1}")
            a(f"v_lshrrev_b32 v{T2}, 4, v{T1}")
            a(f"v_lshl_add_u32 v{T2}, v{T2}, 10, v9")
            a(f"v_bfe_u32 v{T3}, v{T1}, 2, 1")
            a(f"v_lshl_add_u32 v{T2}, v{T3}, 9, v{T2}")
            a(f"v_bfe_u32 v{T3}, v{T1}, 3, 1")
            a(f"v_lshl_add_u32 v{T2}, v{T3}, 3, v{T2}")
            a(f"v_and_b32 v{T3}, 3, v{T1}")
            a(f"v_lshl_add_u32 v{T2}, v{T3}, 1, v{T2}")
            a(f"buffer_load_dword v{dst}, v{T2}, s[12:15], s48 offen")
    a.extend(kv_dma())
    a(f"s_add_u32 s{SM}, s{SM}, {KVSLOT}")
    a(f"v_add_u32 v{KAD}, {KV_BASE}, v{GL16}")
    a(f"v_and_b32 v{T0}, 31, v{L}")
    a(f"v_lshlrev_b32 v{K2AD}, 2, v{T0}")
    a(f"v_add_u32 v{K2AD}, {KV_BASE + 1024}, v{K2AD}")
    a(f"v_min_u32 v{T1}, 18, v{T0}")
    a(f"v_subrev_u32 v{T2}, 20, v{T0}")
    a(f"v_cmp_gt_u32 vcc, 8, v{T2}")
    a("s_nop 1")
    a(f"v_cndmask_b32 v{T1}, v{T1}, 0, vcc")
    a(f"v_lshrrev_b32 v{T2}, 5, v{L}")
    a(f"v_mul_u32_u24 v{T2}, 19, v{T2}")
    a(f"v_add_u32 v{T1}, v{T1}, v{T2}")
    a(f"v_lshlrev_b32 v{T1}, 4, v{T1}")
    a(f"v_add_u32 v{VAD}, {KV_BASE + 1152}, v{T1}")
    a(f"v_mov_b32 v{CNT}, {CNT_A}")
    a(f"v_mov_b32 v{ONE}, 1")
    for r in [QB[0] + 1, QB[1] + 1, KB[0] + 1, KB[1] + 1]:
        a(f"v_mov_b32 v{r}, 0")
    for q in range(2):
        for r in range(16):
            a(f"v_mov_b32 v{O[q]+r}, 0")
    for r in range(8):
        a(f"v_mov_b32 v{P[1]+r}, 0")
        a(f"v_mov_b32 v{VA[1]+r}, 0")
    a(f"s_mov_b32 s{SSL}, 0")
    a(f"s_mov_b32 s{STG}, 4")
    a("s_mov_b32 s51, 0")
    stamp(a, 1)
    a("s_waitcnt vmcnt(5)")
    a("s_mov_b64 exec, 1")
    a(f"ds_add_u32 v{CNT}, v{ONE}")
    a("s_mov_b64 exec, -1")
    a.label("at_poll0")
    a(f"ds_read_b32 v{CV}, v{CNT}")
    a("s_waitcnt lgkmcnt(0)")
    a(f"v_readfirstlane_b32 s55, v{CV}")
    a(f"s_cmp_lt_u32 s55, s{STG}")
    a("s_cbranch_scc1 at_poll0")
    if OPT.get("prio", 3):
        a(f"s_setprio {OPT.get('prio', 3)}")
    if OPT.get("noA"):
        a("s_endpgm")
    stamp(a, 2)

    def kread(b, off):
        return [f"ds_read_b128 v[{KA[b]}:{KA[b]+3}], v{KAD} offset:{off}",
                f"ds_read_b32 v{KB[b]}, v{K2AD} offset:{off}"]

    def vread(b, off):
        return [f"ds_read_b128 v[{VA[b]}:{VA[b]+3}], v{VAD} offset:{off}",
                f"ds_read_b128 v[{VA[b]+4}:{VA[b]+7}], v{VAD} offset:{off+608}"]

    def qk1(q, kb, c):
        s = S[q]
        return f"v_mfma_f32_32x32x16_bf16 v[{s}:{s+15}], v[{KA[kb]}:{KA[kb]+3}], v[{QA[q]}:{QA[q]+3}], {c}"

    def qk2(q, kb):
        s = S[q]
        return f"v_mfma_f32_32x32x8_bf16 v[{s}:{s+15}], v[{KB[kb]}:{KB[kb]+1}], v[{QB[q]}:{QB[q]+1}], v[{s}:{s+15}]"

    def pv(q, vb, h):
        return (f"v_mfma_f32_32x32x16_bf16 v[{O[q]}:{O[q]+15}], v[{VA[vb]+4*h}:{VA[vb]+4*h+3}], "
                f"v[{P[q]+4*h}:{P[q]+4*h+3}], v[{O[q]}:{O[q]+15}]")

    def rowmax(src, dst):
        out = [f"v_max3_f32 v{dst}, v{src}, v{src+1}, v{src+2}"]
        for i in range(3, 15, 2):
            out.append(f"v_max3_f32 v{dst}, v{dst}, v{src+i}, v{src+i+1}")
        out.append(f"v_max_f32 v{dst}, v{dst}, v{src+15}")
        return out

    def xhalf_max(r, t):
        return [f"v_mov_b32 v{t}, v{r}", "s_nop 1", f"v_permlane32_swap_b32 v{r}, v{t}", "s_nop 1",
                f"v_max_f32 v{r}, v{r}, v{t}"]

    def set_ref():
        out = []
        for q, t in ((0, T0), (1, T2)):
            out.append(f"v_add_f32 v{t}, {f32(64.0)}, v{t}")
            out.append(f"v_sub_f32 v{t}, 0, v{t}")
            for r in range(16):
                out.append(f"v_mov_b32 v{C[q]+r}, v{t}")
        return out

    a.extend(kread(0, 0))
    a(f"v_cmp_gt_u32 vcc, 32, v{L}")
    a("s_nop 1")
    a(f"v_cndmask_b32 v{QB[0]}, 0, v{QB[0]}, vcc")
    a(f"v_cndmask_b32 v{QB[1]}, 0, v{QB[1]}, vcc")
    a("s_waitcnt lgkmcnt(0)")
    for q in range(2):
        a(qk1(q, 0, "0"))
        a(qk2(q, 0))
    a("s_nop 7")
    a("s_nop 1")
    a.extend(rowmax(S[0], T0))
    a.extend(rowmax(S[1], T2))
    a.extend(xhalf_max(T0, T1))
    a.extend(xhalf_max(T2, T3))
    a.extend(set_ref())
    for r in range(16):
        a(f"v_add_f32 v{S[0]+r}, v{S[0]+r}, v{T0}")

    def phase(q, m, extra):
        s = S[q]
        ex = lambda r: f"v_exp_f32 v{s+r}, v{s+r}"
        cv = lambda i: f"v_cvt_pk_bf16_f32 v{P[q]+i}, v{s+2*i}, v{s+2*i+1}"
        out = [m[0]] + extra[0] + [ex(0), ex(1), ex(2)]
        out += [m[1]] + extra[1] + [ex(3), cv(0), ex(4), cv(1), ex(5), ex(6), ex(7), cv(2), cv(3)]
        out += [m[2]] + extra[2] + [ex(8), ex(9), ex(10)]
        out += [m[3]] + extra[3] + [ex(11), cv(4), ex(12), cv(5), ex(13), ex(14), ex(15), cv(6), cv(7)]
        return out

    def check(q, tag):
        return ["s_nop 2", f"v_cmp_nlt_f32 vcc, v{O[q]+10}, v{THR}", "s_cmp_lg_u32 vcc_lo, 0",
                f"s_cbranch_scc1 at_rc{tag}", f"at_rc{tag}_ret:"]

    body = []
    for t in range(UNR):
        kb, kn = t % 2, (t + 1) % 2
        vb, vp = t % 2, (t + 1) % 2
        if t == 0:
            body += check(0, "a")
        exA = [[], [], [], []]
        exB = [[], [], [], []]
        if t == UNR - 1:
            exA[0] += [f"v_add_u32 v{KAD}, s{SD}, v{KAD}", f"v_add_u32 v{K2AD}, s{SD}, v{K2AD}"]
            kr = kread(kn, 0)
        else:
            kr = kread(kn, (t + 1) * KV_TILE)
        vr_ = vread(vb, t * KV_TILE)
        exA[1] += kr + [vr_[0]]
        exA[2] += [vr_[1]]
        if t == UNR - 1:
            exB[0] += [f"v_add_u32 v{VAD}, s{SD}, v{VAD}"]
        if t == 1:
            exB[1] += ["s_waitcnt vmcnt(0)", "s_mov_b64 exec, 1", f"ds_add_u32 v{CNT}, v{ONE}", "s_mov_b64 exec, -1",
                       f"s_add_u32 s{STG}, s{STG}, 4"]
            exB[3] += [f"s_add_u32 s{SSL}, s{SSL}, 1", f"s_cmp_eq_u32 s{SSL}, 3",
                       f"s_cselect_b32 s{SSL}, 0, s{SSL}", f"s_mov_b32 s{SD}, {KVSLOT}",
                       f"s_cselect_b32 s{SD}, {(-2*KVSLOT) & 0xffffffff}, s{SD}"]
        if t == 4:
            exA[3] += [f"ds_read_b32 v{CV}, v{CNT}"]
            exB[1] += [f"v_readfirstlane_b32 s55, v{CV}", f"s_cmp_lt_u32 s55, s{STG}",
                       "s_cbranch_scc1 at_poll", "at_poll_ret:"]
        if t == 5:
            d = kv_dma()
            exA[1] += d[0:3]
            exA[3] += d[3:5]
            exB[1] += d[5:6]
            exB[3] += d[6:]
            exB[3] += [f"s_add_u32 s{SM}, s{SM}, {KVSLOT}", f"s_cmp_ge_u32 s{SM}, {CNT_A}",
                       f"s_cselect_b32 s45, {3*KVSLOT}, 0", f"s_sub_u32 s{SM}, s{SM}, s45"]
        mA = [qk1(1, kb, f"v[{C[1]}:{C[1]+15}]"), pv(1, vp, 0), qk2(1, kb), pv(1, vp, 1)]
        body += phase(0, mA, exA)
        if t == 0:
            body += check(1, "b")
        body.append("s_waitcnt lgkmcnt(0)")
        mB = [qk1(0, kn, f"v[{C[0]}:{C[0]+15}]"), pv(0, vb, 0), qk2(0, kn), pv(0, vb, 1)]
        body += phase(1, mB, exB)
    for p in check_hazards(body + body, "attn-loop"):
        print(p, file=sys.stderr)
    stamp(a, 3)
    a.label("at_loop")
    a.extend(body)
    a("s_add_u32 s51, s51, 1")
    a(f"s_cmp_lt_u32 s51, {64 // UNR}")
    a("s_cbranch_scc1 at_loop")
    stamp(a, 4)
    a(pv(1, 1, 0))
    a(pv(1, 1, 1))
    a("s_mov_b32 s50, 0")
    a.label("at_finish")
    a("s_nop 7")
    a("s_nop 3")

    def recentre(q, with_s):
        out = [f"v_frexp_exp_i32_f32 v{T0}, v{O[q]+10}",
               f"v_add_u32 v{T0}, 64, v{T0}",
               f"v_mov_b32 v{T1}, v{T0}", "s_nop 1",
               f"v_permlane32_swap_b32 v{T0}, v{T1}", "s_nop 1",
               f"v_sub_u32 v{T1}, 0, v{T0}",
               f"v_cvt_f32_i32 v{T2}, v{T0}"]
        for r in range(11):
            out.append(f"v_ldexp_f32 v{O[q]+r}, v{O[q]+r}, v{T1}")
        if with_s:
            for r in range(16):
                out.append(f"v_sub_f32 v{C[q]+r}, v{C[q]+r}, v{T2}")
                out.append(f"v_sub_f32 v{S[q]+r}, v{S[q]+r}, v{T2}")
        return out

    for q in range(2):
        a.extend(recentre(q, False))
    a(f"v_add_f32 v{T0}, abs(v{O[0]}), abs(v{O[1]})")
    for q in range(2):
        for r in range(1, 11):
            a(f"v_add_f32 v{T0}, v{T0}, abs(v{O[q]+r})")
    a(f"v_mov_b32 v{T1}, 0x7f800000")
    a(f"v_cmp_nlt_f32 vcc, v{T0}, v{T1}")
    a("s_cmp_lg_u32 s50, 0")
    a("s_cbranch_scc1 at_store")
    a("s_cmp_lg_u64 vcc, 0")
    a("s_cbranch_scc1 at_fallback")
    a.label("at_store")
    a("s_mul_i32 s44, s43, 36")
    for q in range(2):
        a(f"v_mov_b32 v{T0}, v{O[q]+10}")
        a(f"v_mov_b32 v{T1}, v{O[q]+10}")
        a("s_nop 1")
        a(f"v_permlane32_swap_b32 v{T0}, v{T1}")
        a("s_nop 1")
        a(f"v_rcp_f32 v{T0}, v{T0}")
        a("s_nop 0")
        for r in range(10):
            a(f"v_mul_f32 v{O[q]+r}, v{O[q]+r}, v{T0}")
        for i in range(4):
            a(f"v_cvt_pk_bf16_f32 v{P[q]+i}, v{O[q]+2*i}, v{O[q]+2*i+1}")
        a(f"v_cvt_pk_bf16_f32 v{P[0]+4+q}, v{O[q]+8}, v{O[q]+9}")
    a("s_add_u32 s45, s44, s41")
    a("s_lshl_b32 s45, s45, 10")
    a(f"s_add_u32 s45, s45, {WS_O}")
    a(f"buffer_store_dwordx4 v[{P[0]}:{P[0]+3}], v{GL16}, s[12:15], s45 offen")
    a(f"buffer_store_dwordx4 v[{P[1]}:{P[1]+3}], v{GL16}, s[12:15], s45 offen offset:1024")
    a("s_lshr_b32 s45, s41, 3")
    a("s_add_u32 s45, s45, s44")
    a("s_add_u32 s45, s45, 32")
    a("s_lshl_b32 s45, s45, 10")
    a(f"s_add_u32 s45, s45, {WS_O}")
    a("s_bfe_u32 s46, s41, 0x10001")
    a("s_lshl_b32 s46, s46, 9")
    a("s_add_u32 s45, s45, s46")
    a("s_bfe_u32 s46, s41, 0x10002")
    a("s_lshl_b32 s46, s46, 3")
    a("s_add_u32 s45, s45, s46")
    a(f"v_cmp_gt_u32 vcc, 32, v{L}")
    a("s_and_saveexec_b64 s[64:65], vcc")
    a(f"buffer_store_dwordx2 v[{P[0]+4}:{P[0]+5}], v{GL16}, s[12:15], s45 offen")
    diag_dump(a, kid, nw, s_wave=39)
    a("s_endpgm")
    a.label("at_poll")
    a(f"ds_read_b32 v{CV}, v{CNT}")
    a("s_waitcnt lgkmcnt(0)")
    a(f"v_readfirstlane_b32 s55, v{CV}")
    a(f"s_cmp_lt_u32 s55, s{STG}")
    a("s_cbranch_scc1 at_poll")
    a("s_branch at_poll_ret")
    for q, tag in ((0, "a"), (1, "b")):
        a.label(f"at_rc{tag}")
        a("s_nop 7")
        a.extend(recentre(q, True))
        a("s_nop 1")
        a(f"s_branch at_rc{tag}_ret")
    a.label("at_fallback")
    a("s_mov_b32 s50, 1")
    a("s_waitcnt vmcnt(0) lgkmcnt(0)")
    a(f"v_and_b32 v{T0}, 31, v{L}")
    a(f"v_lshlrev_b32 v{K2AD}, 2, v{T0}")
    a(f"v_add_u32 v{K2AD}, 1024, v{K2AD}")
    a(f"v_min_u32 v{T1}, 18, v{T0}")
    a(f"v_lshrrev_b32 v{T2}, 5, v{L}")
    a(f"v_mul_u32_u24 v{T2}, 19, v{T2}")
    a(f"v_add_u32 v{T1}, v{T1}, v{T2}")
    a(f"v_lshlrev_b32 v{T1}, 4, v{T1}")
    a(f"v_add_u32 v{VAD}, 1152, v{T1}")
    a(f"v_mov_b32 v{T0}, 0xff800000")
    a(f"v_mov_b32 v{T2}, 0xff800000")
    a("s_mov_b32 s51, 0")
    a(f"s_mov_b32 s{SK}, {WS_KV}")
    gk = [f"buffer_load_dwordx4 v[{KA[0]}:{KA[0]+3}], v{GL16}, s[12:15], s{SK} offen",
          f"buffer_load_dword v{KB[0]}, v{K2AD}, s[12:15], s{SK} offen"]
    gv = [f"buffer_load_dwordx4 v[{VA[0]}:{VA[0]+3}], v{VAD}, s[12:15], s{SK} offen",
          f"buffer_load_dwordx4 v[{VA[0]+4}:{VA[0]+7}], v{VAD}, s[12:15], s{SK} offen offset:608"]
    a.label("at_fb1")
    a.extend(gk)
    a("s_waitcnt vmcnt(0)")
    for q in range(2):
        a(qk1(q, 0, "0"))
        a(qk2(q, 0))
    a(f"s_add_u32 s{SK}, s{SK}, {KV_TILE}")
    a("s_nop 7")
    a("s_nop 3")
    a.extend(rowmax(S[0], T1))
    a(f"v_max_f32 v{T0}, v{T0}, v{T1}")
    a.extend(rowmax(S[1], T1))
    a(f"v_max_f32 v{T2}, v{T2}, v{T1}")
    a("s_add_u32 s51, s51, 1")
    a("s_cmp_lt_u32 s51, 64")
    a("s_cbranch_scc1 at_fb1")
    a.extend(xhalf_max(T0, T1))
    a.extend(xhalf_max(T2, T3))
    a.extend(set_ref())
    for q in range(2):
        for r in range(16):
            a(f"v_mov_b32 v{O[q]+r}, 0")
    a("s_mov_b32 s51, 0")
    a(f"s_mov_b32 s{SK}, {WS_KV}")
    a.label("at_fb2")
    a.extend(gk + gv)
    a("s_waitcnt vmcnt(0)")
    for q in range(2):
        a(qk1(q, 0, f"v[{C[q]}:{C[q]+15}]"))
        a(qk2(q, 0))
    a(f"s_add_u32 s{SK}, s{SK}, {KV_TILE}")
    a("s_nop 7")
    a("s_nop 3")
    for q in range(2):
        for r in range(16):
            a(f"v_exp_f32 v{S[q]+r}, v{S[q]+r}")
        a("s_nop 0")
        for i in range(8):
            a(f"v_cvt_pk_bf16_f32 v{P[q]+i}, v{S[q]+2*i}, v{S[q]+2*i+1}")
    a("s_nop 1")
    for q in range(2):
        a(pv(q, 0, 0))
        a(pv(q, 0, 1))
    a("s_add_u32 s51, s51, 1")
    a("s_cmp_lt_u32 s51, 64")
    a("s_nop 7")
    a("s_cbranch_scc1 at_fb2")
    a("s_branch at_finish")


def g2_role(a, kid, nw):
    RDL, RD0, RD1, SY, ONE, TV = 5, 6, 7, 15, 14, 13
    WR = 16
    ACS, ACA, ACB = 32, 48, 80
    SQ = 44
    SNX = S_DOFF
    SU1, SU2, SU3 = 48, 49, 50
    SRS, SWS_ = 46, 47
    SX = 52
    SPASS, SSP = 55, 56
    SPB = 63
    a(f"v_mov_b32 v{SY}, {CNT_G}")
    a(f"v_mov_b32 v{TV}, 0")
    a(f"v_mov_b32 v{ONE}, {CNT_A}")
    a(f"ds_write_b32 v{SY}, v{TV}")
    a(f"ds_write_b32 v{ONE}, v{TV}")
    a("s_waitcnt lgkmcnt(0)")
    a("s_barrier")
    if OPT.get("noG"):
        a("s_endpgm")
    emit_lane_consts(a, native=True)
    a(f"s_and_b32 s{S_WAVE}, s{S_WAVE}, 3")
    a(f"s_mul_i32 s{S_W6144}, s{S_WAVE}, 6144")
    a(f"s_mov_b32 s{S_TGT}, 0")
    a("s_bfe_u32 s41, s2, 0x20005")
    a("s_and_b32 s42, s2, 7")
    a("s_lshl_b32 s42, s42, 1")
    a("s_lshr_b32 s60, s2, 7")
    a("s_add_u32 s42, s42, s60")
    a("s_bfe_u32 s51, s2, 0x20003")
    a("s_lshl_b32 s43, s42, 2")
    a(f"s_add_u32 s43, s43, s{S_WAVE}")
    a("s_mov_b32 s58, 1152")
    emit_dma_voffsets(a, 58)
    a(f"v_mov_b32 v{ONE}, 1")
    a("s_mul_i32 s60, s41, 1152")
    a(f"s_mul_i32 s61, s{S_WAVE}, 48")
    a("s_add_u32 s60, s60, s61")
    a("s_mul_i32 s60, s60, 1152")
    a("s_lshl_b32 s61, s51, 8")
    a("s_add_u32 s61, s61, s60")
    a("s_and_b32 s62, s51, 1")
    a("s_lshl_b32 s62, s62, 6")
    a("s_add_u32 s62, s62, 1024")
    a("s_add_u32 s62, s62, s60")
    a(f"s_lshr_b32 s{SSP}, s51, 1")
    P1 = 576 * 1152
    a(f"s_cmp_eq_u32 s{SSP}, 0")
    a("s_add_u32 s64, s61, 128")
    a(f"s_add_u32 s65, s62, {P1}")
    a(f"s_cmp_eq_u32 s{SSP}, 0")
    a(f"s_cselect_b32 s{SNX}, s62, s61")
    a(f"s_cselect_b32 s{SU1}, s61, s64")
    a(f"s_cselect_b32 s{SU2}, s64, s65")
    a(f"s_add_u32 s{SU3}, s61, {P1}")
    a(f"s_mov_b32 s{SWS_}, s{S_W6144}")
    a(f"s_mov_b32 s{SRS}, 0")

    def dma_chunk(c):
        out = []
        for gmm in range(2):
            out.append(f"s_add_u32 m0, s{SWS_}, {gmm*3072}")
            out.append(f"s_add_u32 s{S_T1}, s{SNX}, {(192*c + 24*gmm)*1152}")
            for i in range(3):
                out.append(f"buffer_load_dwordx4 v{V_DOFF+i}, s[{S_W}:{S_W+3}], s{S_T1} offen offset:{1024*i} lds")
        out += [f"s_add_u32 s{SWS_}, s{SWS_}, {WSLOT}", f"s_cmp_ge_u32 s{SWS_}, {W_RING}",
                f"s_cselect_b32 s{S_T1}, {W_RING}, 0", f"s_sub_u32 s{SWS_}, s{SWS_}, s{S_T1}"]
        if c == 2:
            out += [f"s_mov_b32 s{SNX}, s{SU1}", f"s_mov_b32 s{SU1}, s{SU2}", f"s_mov_b32 s{SU2}, s{SU3}",
                    f"s_mov_b32 s{SU3}, s67", f"s_mov_b32 s67, {OOB}"]
        return out

    def xload(s):
        out = []
        if s and s % 4 == 0:
            out.append(f"s_add_u32 s{SX}, s{SX}, 4096")
        out.append(f"buffer_load_dwordx4 v[{V_X+4*s}:{V_X+4*s+3}], v{V_ST}, s[{S_WS}:{S_WS+3}], s{SX} offen offset:{1024*(s%4)}")
        return out

    a(f"s_add_u32 s67, s{SU3}, 128")
    a("s_mul_i32 s60, s43, 324")
    a("s_mul_i32 s61, s41, 72")
    a("s_add_u32 s60, s60, s61")
    a("s_add_u32 s60, s60, 36")
    a(f"s_lshl_b32 s{SX}, s60, 10")
    if OPT.get("gwait", 1):
        a(f"v_mov_b32 v10, {CNT_A}")
        a.label("g_wait_a")
        a(f"ds_read_b32 v{TV}, v10")
        a("s_waitcnt lgkmcnt(0)")
        a(f"v_readfirstlane_b32 s60, v{TV}")
        a("s_cmp_lt_u32 s60, 4")
        a("s_cbranch_scc1 g_wait_a")
    for c in range(3):
        a.extend(dma_chunk(c))
        for s in range(12 * c, 12 * c + 12):
            a.extend(xload(s))
    a(f"s_add_u32 s{SX}, s{SX}, 4096")
    a(f"s_mul_i32 s60, s41, {P_SLICE}")
    a("s_mul_i32 s61, s43, 36864")
    a("s_add_u32 s60, s60, s61")
    a(f"s_add_u32 s{SPB}, s60, {WS_P}")
    for r in range(64):
        a(f"v_mov_b32 v{ACA+r}, 0")
    a(f"s_mov_b32 s{SQ}, 0")
    a(f"s_mov_b32 s{SPASS}, 0")
    stamp(a, 1)

    def reads(sub, s, buf):
        d = WR + 4 * buf
        base = RD0 if sub == 0 else RD1
        off = (s % 12) * 2048
        return [f"ds_read_b64_tr_b16 v[{d}:{d+1}], v{base} offset:{off}",
                f"ds_read_b64_tr_b16 v[{d+2}:{d+3}], v{base} offset:{off+1024}"]

    def sync(c, tag):
        out = []
        if c < 2:
            out += [f"s_cmp_lg_u32 s{SQ}, 0", f"s_cbranch_scc1 g_w{tag}",
                    f"s_waitcnt vmcnt({(36, 24)[c]})", f"s_branch g_x{tag}", f"g_w{tag}:"]
        out += ["s_waitcnt vmcnt(12)"]
        if c < 2:
            out += [f"g_x{tag}:"]
        out += ["s_waitcnt lgkmcnt(0)",
                "s_mov_b64 exec, 1", f"ds_add_u32 v{SY}, v{ONE}", "s_mov_b64 exec, -1",
                f"s_add_u32 s{S_TGT}, s{S_TGT}, 4",
                f"v_add_u32 v{RD0}, s{SRS}, v{RDL}",
                f"v_xor_b32 v{RD1}, 64, v{RD0}",
                f"s_add_u32 s{SRS}, s{SRS}, {WSLOT}", f"s_cmp_ge_u32 s{SRS}, {W_RING}",
                f"s_cselect_b32 s{SRS}, 0, s{SRS}",
                f"g_p{tag}:",
                f"ds_read_b32 v{TV}, v{SY}", "s_waitcnt lgkmcnt(0)",
                f"v_readfirstlane_b32 s{S_TGT+2}, v{TV}",
                f"s_cmp_ge_u32 s{S_TGT+2}, s{S_TGT}", f"s_cbranch_scc0 g_p{tag}"]
        return out

    def unit(kind):
        out = []
        acc = {"S": ACS, "A": ACA, "B": ACB}[kind]
        nsub = 1 if kind == "S" else 2
        for c in range(3):
            out += sync(c, f"{kind}{c}")
            seq = [(sub, s) for s in range(12 * c, 12 * c + 12) for sub in range(nsub)]
            n = len(seq)
            depth = 3 if nsub == 1 else 2
            fill = {i: [] for i in range(n)}
            d = dma_chunk(c)
            for k, x in enumerate(d):
                fill[k * (n - 1) // len(d)].append(x)
            for i in range(depth):
                out += reads(seq[i][0], seq[i][1], i % 4)
            for i, (sub, s) in enumerate(seq):
                if nsub == 2:
                    if i % 2 == 0:
                        if i + 2 < n:
                            out += reads(seq[i + 2][0], seq[i + 2][1], (i + 2) % 4)
                            out += reads(seq[i + 3][0], seq[i + 3][1], (i + 3) % 4)
                            out.append("s_waitcnt lgkmcnt(4)")
                        else:
                            out.append("s_waitcnt lgkmcnt(0)")
                else:
                    rem = min(depth - 1, n - 1 - i)
                    out.append(f"s_waitcnt lgkmcnt({2*rem})")
                w = WR + 4 * (i % 4)
                x = V_X + 4 * s
                t = acc + 16 * sub
                cc = "0" if (kind == "S" and s == 0) else f"v[{t}:{t+15}]"
                out.append(f"v_mfma_f32_32x32x16_bf16 v[{t}:{t+15}], v[{w}:{w+3}], v[{x}:{x+3}], {cc}")
                if nsub == 1 and i + depth < n:
                    out += reads(seq[i + depth][0], seq[i + depth][1], (i + depth) % 4)
                out += fill[i]
                if kind == "B" and sub == 1:
                    out += xload(s)
        out.append(f"s_add_u32 s{SQ}, s{SQ}, 1")
        return out

    def store_tile(t, soff, imm0=0):
        out = [f"v_cvt_pk_bf16_f32 v{t+i}, v{t+2*i}, v{t+2*i+1}" for i in range(8)]
        out += [f"buffer_store_dwordx4 v[{t}:{t+3}], v{V_ST}, s[{S_WS}:{S_WS+3}], s{soff} offen offset:{imm0}",
                f"buffer_store_dwordx4 v[{t+4}:{t+7}], v{V_ST}, s[{S_WS}:{S_WS+3}], s{soff} offen offset:{imm0+1024}"]
        return out

    stamp(a, 3)
    a.label("g_pass")
    a(f"s_cmp_lg_u32 s{SPASS}, s{SSP}")
    a("s_cbranch_scc1 g_nosingle")
    uS, uA, uB = unit("S"), unit("A"), unit("B")
    for p in check_hazards(uS + uA + uB + uA, "g2-units"):
        print(p, file=sys.stderr)
    a.extend(uS)
    a(f"s_add_u32 s60, s41, s{SPASS}")
    a(f"s_mul_i32 s60, s60, {P_SLICE}")
    a(f"s_add_u32 s60, s60, s{SPB}")
    a("s_and_b32 s61, s51, 1")
    a("s_lshl_b32 s61, s61, 11")
    a("s_add_u32 s60, s60, s61")
    a("s_add_u32 s60, s60, 32768")
    a("s_nop 4")
    a.extend(store_tile(ACS, 60))
    a.label("g_nosingle")
    a.extend(uA)
    a.extend(uB)
    a(f"s_mov_b32 s{SX}, {OOB}")
    a(f"s_add_u32 s{SPASS}, s{SPASS}, 1")
    a(f"s_cmp_lt_u32 s{SPASS}, 2")
    a("s_cbranch_scc1 g_pass")
    stamp(a, 4)
    if OPT.get("k3pf", 1):
        a("s_load_dwordx2 s[24:25], s[0:1], 0")
        a("s_load_dwordx2 s[26:27], s[0:1], 32")
        a("s_lshr_b32 s60, s2, 3")
        a("s_lshl_b32 s60, s60, 2")
        a(f"s_add_u32 s60, s60, s{S_WAVE}")
        a(f"v_lshlrev_b32 v10, 7, v{V_L}")
        a(f"v_min_u32 v11, {17*128}, v10")
        a(f"v_min_u32 v10, {40*128}, v10")
        a(f"s_mul_i32 s61, s60, {41*128}")
        a(f"s_mul_i32 s62, s60, {18*128}")
        a("s_and_b32 s60, s2, 7")
        a("s_mul_i32 s60, s60, 294912")
        a("s_add_u32 s62, s62, s60")
        a("s_waitcnt lgkmcnt(0)")
        srd(a, 4, 24, X_BYTES)
        srd(a, 20, 26, 576 * 576 * 2)
        a("buffer_load_dword v12, v10, s[20:23], s61 offen")
        a("buffer_load_dword v12, v11, s[4:7], s62 offen")
    a("s_lshl_b32 s60, s51, 13")
    a(f"s_add_u32 s60, s60, s{SPB}")
    a("s_add_u32 s61, s60, 4096")
    a("s_nop 7")
    a.extend(store_tile(ACA, 60, 0))
    a.extend(store_tile(ACA + 16, 60, 2048))
    a.extend(store_tile(ACB, 61, 0))
    a.extend(store_tile(ACB + 16, 61, 2048))
    diag_dump(a, kid, nw, s_wave=39)
    a("s_endpgm")


def gen_k2():
    a = Asm()
    kernel_header(a, "k2_kernel")
    a("s_cmp_ge_u32 s2, 256")
    a("s_cbranch_scc1 k2_end")
    stamp(a, 0)
    stamp_rt(a, 13)
    a("s_load_dwordx2 s[32:33], s[0:1], 64")
    a("s_load_dwordx2 s[36:37], s[0:1], 96")
    a("v_lshrrev_b32 v2, 6, v0")
    a("s_nop 0")
    a("v_readfirstlane_b32 s39, v2")
    a("s_waitcnt lgkmcnt(0)")
    srd(a, S_WS, 36, WS_BYTES)
    srd(a, S_W, 32, 4608 * 576 * 2)
    a("s_cmp_ge_u32 s39, 4")
    a("s_cbranch_scc1 k2_g")
    attn_role(a, 1, 8)
    a.label("k2_g")
    g2_role(a, 1, 8)
    a.label("k2_end")
    a("s_endpgm")
    return a


def main(out):
    k1 = gen_k1()
    k2 = gen_k2()
    k3 = gen_k3(split4=True)
    for nm, k in (("k1", k1), ("k2", k2), ("k3", k3)):
        for p in check_hazards(k.lines, nm):
            print(p, file=sys.stderr)
    hdr = open("cdna_kernels/" + NAME + ".s.ref").read().split("; Override launch")[0]
    txt = hdr
    txt += f"; @launch kernel=k1_kernel grid=(256,1,1) block=(256,1,1) lds={2*REGION}\n"
    txt += f"; @launch kernel=k2_kernel grid=(256,1,1) block=(512,1,1) lds={K2_LDS}\n"
    txt += f"; @launch kernel=k3_kernel grid=(288,1,1) block=(256,1,1) lds={REGION}\n"
    txt += '.amdgcn_target "amdgcn-amd-amdhsa--gfx950"\n.text\n'
    for k in (k1, k2, k3):
        txt += k.text()
    txt += '.section .rodata,"a"\n'
    txt += descriptor("k1_kernel", 256)
    txt += descriptor("k2_kernel", 256)
    txt += descriptor("k3_kernel", 256)
    open(out, "w").write(txt)


if __name__ == "__main__":
    if "-diag" in sys.argv:
        gen.DIAG = True
        sys.argv.remove("-diag")
    for x in list(sys.argv):
        if x.startswith("-O"):
            k, v = x[2:].split("=")
            OPT[k] = int(v)
            sys.argv.remove(x)
    main(sys.argv[1] if len(sys.argv) > 1 else "cdna_kernels/" + NAME + ".s")
```

```python
import sys
import gen
import gen3
from gen import *
from gen3 import gen_k2, OPT, K2_LDS

V_PF = gen.V_PF
S_PF = gen.S_PF
WS_R = 0x1580000


def gen_k1():
    a = Asm()
    kernel_header(a, "k1_kernel")
    a("s_cmp_ge_u32 s2, 256")
    a("s_cbranch_scc1 k1_end")
    stamp(a, 0)
    stamp_rt(a, 13)
    a("s_load_dwordx4 s[24:27], s[0:1], 0")
    a("s_load_dwordx4 s[28:31], s[0:1], 16")
    a("s_load_dwordx4 s[32:35], s[0:1], 48")
    a("s_load_dwordx2 s[36:37], s[0:1], 96")
    emit_lane_consts(a, native=False)
    M8 = OPT.get("m8", 0)
    if not M8:
        a("s_and_b32 s41, s2, 3")
        a("s_lshl_b32 s41, s41, 2")
        a("s_bfe_u32 s60, s2, 0x20003")
        a("s_add_u32 s41, s41, s60")
        a("s_bfe_u32 s42, s2, 0x10002")
        a("s_lshl_b32 s42, s42, 3")
        a("s_lshr_b32 s38, s2, 5")
        a("s_add_u32 s42, s42, s38")
    else:
        a("s_and_b32 s41, s2, 1")
        a("s_lshl_b32 s41, s41, 3")
        a("s_bfe_u32 s60, s2, 0x30003")
        a("s_add_u32 s41, s41, s60")
        a("s_bfe_u32 s42, s2, 0x20001")
        a("s_lshl_b32 s42, s42, 2")
        a("s_lshr_b32 s38, s2, 6")
        a("s_add_u32 s42, s42, s38")
    a("s_lshl_b32 s43, s42, 2")
    a(f"s_add_u32 s43, s43, s{S_WAVE}")
    l = V_L
    t0, t1, t2, t3 = V_TMP, V_TMP + 1, V_TMP + 2, V_TMP + 3
    XA, XB = 32, 33
    a(f"v_lshrrev_b32 v{t0}, 3, v{l}")
    a(f"v_and_b32 v{t1}, 7, v{l}")
    a(f"v_lshrrev_b32 v{t2}, 4, v{l}")
    a(f"v_xor_b32 v{t1}, v{t1}, v{t2}")
    a(f"v_mul_u32_u24 v{t0}, 1152, v{t0}")
    a(f"v_lshl_add_u32 v{XA}, v{t1}, 4, v{t0}")
    a(f"v_xor_b32 v{XB}, 64, v{XA}")
    a("s_lshl_b32 s60, s41, 2")
    a("s_sub_u32 s60, s60, 1")
    a("s_mul_i32 s61, s41, 5")
    a("s_sub_u32 s61, s61, 9")
    a("s_cmp_lt_u32 s41, 9")
    a("s_cselect_b32 s48, s60, s61")
    a("s_mov_b32 s49, 9216")
    a("s_cselect_b32 s49, 1152, s49")
    a("s_cselect_b32 s63, s41, s48")
    TL, TR = 44, 45
    a(f"v_lshlrev_b32 v{TL}, 7, v{l}")
    NSH = 36 if M8 else 18
    a(f"v_min_u32 v{TR}, {NSH-1}, v{l}")
    a("s_lshl_b32 s68, s38, 2")
    a(f"s_add_u32 s68, s68, s{S_WAVE}")
    a(f"s_mul_i32 s68, s68, {NSH}")
    a(f"v_add_u32 v{TR}, s68, v{TR}")
    a(f"v_mul_lo_u32 v{TR+1}, v{TR}, s49")
    a(f"v_mul_u32_u24 v{V_PF}, 9216, v{TR}")
    a("s_and_b32 s60, s41, 3")
    a("s_lshl_b32 s60, s60, 2")
    a(f"s_add_u32 s60, s60, s{S_WAVE}")
    a("s_mul_i32 s60, s60, 9216")
    a("s_mul_i32 s61, s42, 147456")
    a("s_add_u32 s62, s60, s61")
    a("s_mul_i32 s60, s43, 36864")
    a("s_waitcnt lgkmcnt(0)")
    stamp(a, 7)
    srd(a, 4, 24, X_BYTES)
    srd(a, 20, 32, 576 * 4608 * 2)
    a("s_cmp_lt_u32 s41, 9")
    a("s_cselect_b32 s8, s26, s32")
    a("s_cselect_b32 s9, s27, s33")
    a(f"s_mov_b32 s10, {576*4608*2}")
    a(f"s_cselect_b32 s10, {576*576*2}, s10")
    a("s_mov_b32 s11, 0x00020000")
    order = [(q, rho) for q in range(9) for rho in range(4)]
    if OPT.get("rowmajor"):
        order = [(q, rho) for rho in range(4) for q in range(9)]
    for qq in range(9):
        for (q, rho) in order[4 * qq: 4 * qq + 4]:
            if q < 6:
                lds = q * 24576 + rho * 1024
            else:
                lds = (2 * (q - 6) + (rho >> 1)) * 24576 + 4096 + (rho & 1) * 1024
            a(f"s_add_u32 m0, s{S_W6144}, {lds}")
            a(f"s_add_u32 s61, s60, {rho*9216 + q*128}")
            a(f"buffer_load_dwordx4 v{XB if rho & 1 else XA}, s[4:7], s61 offen lds")
        q = qq
        if q in (0, 2, 5, 8):
            stamp(a, {0: 8, 2: 9, 5: 10, 8: 11}[q])
        if q == 0 and OPT.get("w1st"):
            a("s_waitcnt vmcnt(0)")
            stamp(a, 12)
    a("s_lshl_b32 s61, s63, 7")
    a(f"buffer_load_dword v34, v{TR+1}, s[8:11], s61 offen")
    a("s_add_u32 s61, s48, 1")
    a("s_lshl_b32 s61, s61, 7")
    a(f"buffer_load_dword v35, v{V_PF}, s[20:23], s61 offen")
    a(f"s_add_u32 s{S_PF}, s61, 128")
    srd(a, S_WS, 36, WS_BYTES)
    srd(a, S_B, 34, 4608 * 2)
    npf = 2
    a("s_lshl_b32 s60, s63, 2")
    a("s_add_u32 s61, s60, 36")
    a("s_cmp_lt_u32 s41, 9")
    a("s_cselect_b32 s60, s60, s61")
    a("s_mul_i32 s56, s43, 324")
    a("s_add_u32 s60, s60, s56")
    a(f"s_lshl_b32 s{S_ST0}, s60, 10")
    a(f"s_mov_b32 s{S_ST1}, {OOB}")
    emit_dma_voffsets(a, 49)
    a(f"s_mul_i32 s60, s{S_WAVE}, 48")
    a("s_mul_i32 s60, s60, s49")
    a("s_lshl_b32 s61, s63, 7")
    a(f"s_add_u32 s{S_DOFF}, s60, s61")
    a(f"s_mov_b32 s{S_REG}, 0")
    a(f"s_mov_b32 s{S_REGW}, s{S_W6144}")
    a(f"v_and_b32 v{V_BOFF}, 31, v{V_L}")
    a(f"v_lshlrev_b32 v{V_BOFF}, 1, v{V_BOFF}")
    a("s_lshl_b32 s60, s48, 7")
    a("s_add_u32 s61, s60, 64")
    a("s_cmp_lt_u32 s41, 9")
    a(f"s_cselect_b32 s62, {OOB}, s60")
    a(f"s_cselect_b32 s{S_BO1}, {OOB}, s61")
    a(f"s_add_u32 s{S_BO0}, s60, 128")
    a(f"buffer_load_ushort v{V_B0}, v{V_BOFF}, s[{S_B}:{S_B+3}], s62 offen")
    for r in (V_B0 + 1, V_B0 + 2, V_B0 + 3, V_B1 + 1, V_B1 + 2, V_B1 + 3, V_ONE + 1, V_ONE + 2, V_ONE + 3):
        a(f"v_mov_b32 v{r}, 0")
    B1, B2 = 36, 40
    a(f"v_and_b32 v{t0}, 31, v{l}")
    a(f"v_lshrrev_b32 v{t1}, 1, v{t0}")
    a(f"v_and_b32 v{t1}, 7, v{t1}")
    a(f"v_lshrrev_b32 v{t2}, 5, v{l}")
    a(f"v_xor_b32 v{t1}, v{t1}, v{t2}")
    a(f"v_lshlrev_b32 v{t1}, 4, v{t1}")
    a(f"v_and_b32 v{t2}, 7, v{t0}")
    a(f"v_lshl_add_u32 v{t1}, v{t2}, 7, v{t1}")
    a(f"v_add_u32 v{t1}, s{S_W6144}, v{t1}")
    a(f"v_lshrrev_b32 v{t2}, 3, v{t0}")
    a(f"v_lshl_add_u32 v{B1}, v{t2}, 10, v{t1}")
    a(f"v_and_b32 v{t3}, 1, v{t2}")
    a(f"v_lshl_add_u32 v{B2}, v{t3}, 10, v{t1}")
    a(f"v_lshrrev_b32 v{t2}, 1, v{t2}")
    a(f"v_mul_u32_u24 v{t2}, 24576, v{t2}")
    a(f"v_add3_u32 v{B2}, v{B2}, v{t2}, v{t2}" .replace(f", v{t2}, v{t2}", f", v{t2}, 0"))
    a(f"v_add_u32 v{B2}, 4096, v{B2}")
    for k in range(1, 4):
        a(f"v_xor_b32 v{B1+k}, {32*k}, v{B1}")
        a(f"v_xor_b32 v{B2+k}, {32*k}, v{B2}")
    stamp(a, 1)
    S0, Q0 = V_T, V_T + 4
    for i in range(8):
        a(f"v_mov_b32 v{V_T+i}, 0")
    ONES, LO1, HI1 = V_T + 8, V_T + 9, V_T + 10
    a(f"v_mov_b32 v{ONES}, 0x3f803f80")
    a(f"v_mov_b32 v{LO1}, 0x00003f80")
    a(f"v_mov_b32 v{HI1}, 0x3f800000")
    def stats(q):
        for i in range(16 * q, 16 * q + 16):
            r = V_X + i
            d = i % 4
            a(f"v_dot2c_f32_bf16 v{S0+d}, v{r}, v{ONES}")
            a(f"v_dot2c_f32_bf16 v{Q0+d}, v{r}, v{r}")

    for q in range(9):
        a(f"s_waitcnt vmcnt({npf + 1 + (0 if OPT.get('rowmajor') else 32 - 4*q)})")
        for k in range(4):
            s = 4 * q + k
            if q < 6:
                base, off = B1 + k, (q % 2) * 24576
            else:
                base, off = B2 + k, 0
            a(f"ds_read_b128 v[{V_X+4*s}:{V_X+4*s+3}], v{base} offset:{off}")
        if q in (1, 3):
            for k in range(4):
                a(f"v_add_u32 v{B1+k}, 49152, v{B1+k}")
        if q in (6, 7):
            for k in range(4):
                a(f"v_add_u32 v{B2+k}, 49152, v{B2+k}")
        if q >= 1:
            a("s_waitcnt lgkmcnt(4)")
            stats(q - 1)
    a("s_waitcnt lgkmcnt(0)")
    stamp(a, 2)
    for g in dma_groups():
        a.extend(plain(g))
    srd(a, S_W, 32, 576 * 4608 * 2)
    a("s_mov_b32 s49, 9216")
    emit_dma_voffsets(a, 49)
    a(f"s_mul_i32 s60, s{S_WAVE}, {48*9216}")
    a("s_add_u32 s61, s48, 1")
    a("s_lshl_b32 s61, s61, 7")
    a(f"s_add_u32 s{S_DOFF}, s60, s61")
    a(f"s_mov_b32 s{S_REG}, {REGION}")
    a(f"s_add_u32 s{S_REGW}, s{S_REG}, s{S_W6144}")
    a(f"s_mov_b32 s{S_U}, 0")
    a(f"s_mov_b32 s{S_SINGLE}, 0")
    a("s_cmp_eq_u32 s41, 9")
    a(f"s_cselect_b32 s{S_SINGLE}, 1, s{S_SINGLE}")
    a("s_cmp_eq_u32 s41, 10")
    a(f"s_cselect_b32 s{S_SINGLE}, 1, s{S_SINGLE}")
    a("s_cmp_eq_u32 s41, 11")
    a(f"s_cselect_b32 s{S_SINGLE}, 2, s{S_SINGLE}")
    a("s_cmp_eq_u32 s41, 12")
    a(f"s_cselect_b32 s{S_SINGLE}, 3, s{S_SINGLE}")
    a("s_add_u32 s60, s48, 1")
    a("s_lshl_b32 s60, s60, 2")
    a("s_add_u32 s60, s60, 36")
    a("s_add_u32 s60, s60, s56")
    a("s_lshl_b32 s52, s60, 10")
    stats(8)
    a("s_nop 2")
    a(f"v_add_f32 v{S0}, v{S0}, v{S0+1}")
    a(f"v_add_f32 v{S0+2}, v{S0+2}, v{S0+3}")
    a(f"v_add_f32 v{Q0}, v{Q0}, v{Q0+1}")
    a(f"v_add_f32 v{Q0+2}, v{Q0+2}, v{Q0+3}")
    a(f"v_add_f32 v{S0}, v{S0}, v{S0+2}")
    a(f"v_add_f32 v{Q0}, v{Q0}, v{Q0+2}")
    a(f"v_mov_b32 v{S0+1}, v{S0}")
    a(f"v_mov_b32 v{Q0+1}, v{Q0}")
    a("s_nop 1")
    a(f"v_permlane32_swap_b32 v{S0}, v{S0+1}")
    a(f"v_permlane32_swap_b32 v{Q0}, v{Q0+1}")
    a("s_nop 1")
    a(f"v_add_f32 v{S0}, v{S0}, v{S0+1}")
    a(f"v_add_f32 v{Q0}, v{Q0}, v{Q0+1}")
    a(f"v_mul_f32 v{S0}, {f32(1/576)}, v{S0}")
    a(f"v_mul_f32 v{Q0}, {f32(1/576)}, v{Q0}")
    a(f"v_fma_f32 v{Q0}, -v{S0}, v{S0}, v{Q0}")
    a(f"v_max_f32 v{Q0}, 0, v{Q0}")
    a(f"v_cvt_pk_bf16_f32 v{S0+1}, v{S0}, v{Q0}")
    a(f"v_lshlrev_b32 v{S0}, 16, v{S0+1}")
    a(f"v_xor_b32 v{S0}, 0x80000000, v{S0}")
    a(f"v_and_b32 v{Q0}, 0xffff0000, v{S0+1}")
    a(f"v_add_f32 v{Q0}, {f32(1e-5)}, v{Q0}")
    a(f"v_cvt_pk_bf16_f32 v{Q0}, v{Q0}, v{Q0}")
    a(f"v_and_b32 v{Q0}, 0xffff0000, v{Q0}")
    a(f"v_sqrt_f32 v{Q0}, v{Q0}")
    a("s_nop 0")
    a(f"v_cvt_pk_bf16_f32 v{Q0}, v{Q0}, v{Q0}")
    a(f"v_and_b32 v{Q0+1}, 0xffff, v{Q0}")
    a(f"v_and_b32 v{Q0}, 0xffff0000, v{Q0}")
    a(f"v_rcp_f32 v15, v{Q0}")
    a(f"v_cmp_gt_u32 vcc, 32, v{V_L}")
    a("s_nop 1")
    a(f"v_cndmask_b32 v{V_ONE}, 0, v{Q0+1}, vcc")
    a(f"v_mul_f32 v{t0}, {f32(QSCALE)}, v15")
    a(f"v_mov_b32 v{t1}, 0x7f800000")
    a("s_cmp_lt_u32 s41, 9")
    a("s_cselect_b64 vcc, -1, 0")
    a(f"v_cndmask_b32 v{V_PA0}, 0, v{t0}, vcc")
    a(f"v_cndmask_b32 v{V_PB0}, v{t1}, v{t0}, vcc")
    a(f"v_mov_b32 v{V_PA1}, 0")
    a(f"v_mov_b32 v{V_PB1}, 0")
    a(f"v_mul_f32 v{t2}, v15, v15")
    a(f"v_lshlrev_b32 v{t3}, 1, v{V_BOFF}")
    a("s_lshl_b32 s60, s43, 7")
    a(f"s_add_u32 s60, s60, {WS_R}")
    a("s_cmp_eq_u32 s41, 13")
    a(f"s_cselect_b32 s60, s60, {OOB}")
    a(f"buffer_store_dword v{t2}, v{t3}, s[{S_WS}:{S_WS+3}], s60 offen")
    stamp(a, 6)
    for i in range(144):
        r = V_X + i
        t = V_T + 12 + 2 * (i % 6) if False else 44 + 2 * (i % 6)
        a(f"v_dot2_f32_bf16 v{t}, v{r}, v{LO1}, v{S0}")
        a(f"v_dot2_f32_bf16 v{t+1}, v{r}, v{HI1}, v{S0}")
        if i >= 2:
            j = i - 2
            tj = 44 + 2 * (j % 6)
            a(f"v_cvt_pk_bf16_f32 v{V_X+j}, v{tj}, v{tj+1}")
    a("s_nop 1")
    for j in (142, 143):
        tj = 44 + 2 * (j % 6)
        a("s_nop 0")
        a(f"v_cvt_pk_bf16_f32 v{V_X+j}, v{tj}, v{tj+1}")
    stamp(a, 5)
    a("s_waitcnt vmcnt(0)")
    a("s_barrier")
    top = [f"s_cmp_ge_u32 s{S_U}, 4", "s_cbranch_scc1 k1_setup", "k1_setup_done:"]
    nxt = [f"s_mov_b32 s{S_ST0}, s52", "s_add_u32 s52, s52, 4096"]
    gen.LOOP_PF = True
    emit_gemm_loop(a, "k1", False, True, "act", 5, nxt, top)
    gen.LOOP_PF = False
    a.label("k1_setup")
    a(f"s_mov_b32 s{S_DOFF}, {OOB}")
    a(f"s_mov_b32 s{S_BO0}, {OOB}")
    a(f"s_cmp_eq_u32 s{S_U}, 5")
    a("s_cbranch_scc1 k1_setup_done")
    a(f"s_cmp_eq_u32 s{S_SINGLE}, 0")
    a("s_cbranch_scc1 k1_setup_done")
    a(f"s_cmp_eq_u32 s{S_SINGLE}, 1")
    a("s_cbranch_scc0 k1_setup_kv")
    a("s_add_u32 s60, s41, 133")
    a("s_lshl_b32 s61, s60, 6")
    a(f"s_mov_b32 s{S_BO0}, s61")
    a(f"s_mul_i32 s62, s{S_WAVE}, {48*9216}")
    a(f"s_add_u32 s{S_DOFF}, s62, s61")
    a("s_lshl_b32 s60, s60, 1")
    a("s_add_u32 s60, s60, 36")
    a("s_add_u32 s60, s60, s56")
    a("s_lshl_b32 s52, s60, 10")
    a("s_branch k1_setup_done")
    a.label("k1_setup_kv")
    a(f"s_cmp_eq_u32 s{S_SINGLE}, 2")
    a("s_cselect_b32 s60, s28, s30")
    a("s_cselect_b32 s61, s29, s31")
    a("s_sub_u32 s8, s60, 2048")
    a("s_subb_u32 s9, s61, 0")
    a(f"s_mov_b32 s10, {576*36 + 2048}")
    a("s_mov_b32 s11, 0x00020000")
    a("s_mov_b32 s49, 36")
    emit_dma_voffsets(a, 49, bias=2048)
    a(f"s_mul_i32 s{S_DOFF}, s{S_WAVE}, {48*36}")
    a("s_branch k1_setup_done")
    a.label("k1_single_exit")
    stamp(a, 4)
    a("s_nop 7")
    a("s_nop 3")
    a(f"s_cmp_eq_u32 s{S_SINGLE}, 1")
    a("s_cbranch_scc0 k1_exit_kv")
    a.extend(plain(epilogue("act", V_A0, V_PA0, V_PB0, S_ST0)))
    diag_dump(a, 0, 4)
    a("s_endpgm")
    a.label("k1_exit_kv")
    a(f"s_mul_i32 s60, s43, {KV_TILE}")
    a(f"s_add_u32 s60, s60, {WS_KV}")
    for r in range(10):
        a(f"v_mul_f32 v{V_A0+r}, v{V_A0+r}, v15")
    for i in range(5):
        a(f"v_cvt_pk_bf16_f32 v{V_K+i}, v{V_A0+2*i}, v{V_A0+2*i+1}")
    a(f"s_cmp_eq_u32 s{S_SINGLE}, 2")
    a("s_cbranch_scc0 k1_exit_v")
    a(f"buffer_store_dwordx4 v[{V_K}:{V_K+3}], v{V_ST}, s[{S_WS}:{S_WS+3}], s60 offen")
    a(f"v_lshlrev_b32 v{V_TMP}, 2, v{V_L}")
    a(f"v_cmp_gt_u32 vcc, 32, v{V_L}")
    a("s_and_saveexec_b64 s[64:65], vcc")
    a(f"buffer_store_dword v{V_K+4}, v{V_TMP}, s[{S_WS}:{S_WS+3}], s60 offen offset:1024")
    a("s_endpgm")
    a.label("k1_exit_v")
    a(f"v_bfe_u32 v{t0}, v{V_L}, 4, 1")
    a(f"v_bfe_u32 v{t1}, v{V_L}, 2, 1")
    a(f"v_lshl_add_u32 v{t0}, v{t0}, 1, v{t1}")
    a(f"v_mul_u32_u24 v{t0}, 304, v{t0}")
    a(f"v_bfe_u32 v{t1}, v{V_L}, 3, 1")
    a(f"v_and_b32 v{t2}, 3, v{V_L}")
    a(f"v_lshl_add_u32 v{t1}, v{t1}, 2, v{t2}")
    a(f"v_lshl_add_u32 v{t0}, v{t1}, 1, v{t0}")
    a(f"v_lshrrev_b32 v{t1}, 5, v{V_L}")
    a(f"v_lshl_add_u32 v{t0}, v{t1}, 6, v{t0}")
    for i in range(4):
        d = ((2 * i) & 3) + 8 * ((2 * i) >> 2)
        a(f"buffer_store_short v{V_K+i}, v{t0}, s[{S_WS}:{S_WS+3}], s60 offen offset:{1152 + d*16}")
        a(f"buffer_store_short_d16_hi v{V_K+i}, v{t0}, s[{S_WS}:{S_WS+3}], s60 offen offset:{1152 + (d+1)*16}")
    t3 = V_T
    a(f"v_mov_b32 v{t3}, 0x3f80")
    a(f"v_cmp_gt_u32 vcc, 32, v{V_L}")
    a("s_and_saveexec_b64 s[64:65], vcc")
    a(f"buffer_store_short v{V_K+4}, v{t0}, s[{S_WS}:{S_WS+3}], s60 offen offset:{1152 + 16*16}")
    a(f"buffer_store_short_d16_hi v{V_K+4}, v{t0}, s[{S_WS}:{S_WS+3}], s60 offen offset:{1152 + 17*16}")
    a(f"buffer_store_short v{t3}, v{t0}, s[{S_WS}:{S_WS+3}], s60 offen offset:{1152 + 18*16}")
    a.label("k1_end")
    a("s_endpgm")
    return a


def gen_k3():
    a = Asm()
    kernel_header(a, "k3_kernel")
    PF, ACC, E, XR = 32, 96, 16, 24
    a("s_cmp_ge_u32 s2, 256")
    a("s_cbranch_scc1 k3_end")
    stamp(a, 0)
    stamp_rt(a, 13)
    a("s_load_dwordx2 s[24:25], s[0:1], 0")
    a("s_load_dwordx2 s[32:33], s[0:1], 32")
    a("s_load_dwordx4 s[28:31], s[0:1], 72")
    a("s_load_dwordx2 s[36:37], s[0:1], 96")
    emit_lane_consts(a, native=True)
    a("s_and_b32 s42, s2, 7")
    a("s_lshl_b32 s42, s42, 2")
    a("s_lshr_b32 s60, s2, 6")
    a("s_add_u32 s42, s42, s60")
    a("s_bfe_u32 s41, s2, 0x30003")
    a(f"s_cmp_eq_u32 s{S_WAVE}, 4")
    a(f"s_cselect_b32 s60, s41, s{S_WAVE}")
    a("s_cselect_b32 s61, 8, s41")
    a("s_lshl_b32 s43, s42, 1")
    a("s_lshr_b32 s62, s60, 1")
    a("s_add_u32 s43, s43, s62")
    a("s_and_b32 s48, s60, 1")
    a("s_lshl_b32 s49, s61, 1")
    a("s_add_u32 s49, s49, s48")
    l = V_L
    t0, t1, t2, t3 = 10, 11, 12, 13
    a(f"v_lshrrev_b32 v{t0}, 3, v{l}")
    a(f"v_and_b32 v{t1}, 7, v{l}")
    a(f"v_bfe_u32 v{t2}, v{l}, 4, 1")
    a(f"v_lshlrev_b32 v{t2}, 2, v{t2}")
    a(f"v_xor_b32 v{t1}, v{t1}, v{t2}")
    a(f"v_lshlrev_b32 v{t1}, 4, v{t1}")
    a(f"v_mul_u32_u24 v{t2}, 1152, v{t0}")
    a(f"v_add_u32 v{V_DOFF}, v{t2}, v{t1}")
    a(f"v_lshrrev_b32 v{t2}, 1, v{t0}")
    a(f"v_mul_u32_u24 v{t2}, 18, v{t2}")
    a(f"v_and_b32 v{t3}, 1, v{t0}")
    a(f"v_add_u32 v{t2}, v{t2}, v{t3}")
    a(f"v_mul_u32_u24 v{t2}, 1152, v{t2}")
    a(f"v_add_u32 v{V_DOFF+1}, v{t2}, v{t1}")
    a("s_waitcnt lgkmcnt(0)")
    srd(a, S_WS, 36, WS_BYTES)
    srd(a, S_W, 32, 576 * 576 * 2)
    srd(a, 4, 24, X_BYTES)
    srd(a, S_B, 28, 1152)
    srd(a, 20, 30, X_BYTES)
    a(f"s_cmp_lt_u32 s{S_WAVE}, 4")
    a("s_cbranch_scc1 k3_main")
    a("s_cmp_lt_u32 s41, 4")
    a("s_cbranch_scc1 k3_extra")
    a("s_endpgm")
    a.label("k3_extra")
    a(f"v_add_u32 v{V_RD}, {REGION}, v{V_RD}")
    a(f"v_add_u32 v{V_RD+1}, {REGION}, v{V_RD+1}")
    a("s_branch k3_common")
    a.label("k3_main")
    a("s_lshl_b32 s61, s41, 7")
    a("s_mov_b32 s44, 0")
    a.label("k3_wl")
    a(f"s_mul_i32 s60, s{S_WAVE}, {8*18*1152}")
    a("s_add_u32 s60, s60, s61")
    a(f"s_lshl_b32 s62, s{S_WAVE}, 14")
    a("s_add_u32 s62, s62, s44")
    for p in range(16):
        a(f"s_add_u32 m0, s62, {1024*p}")
        a(f"s_add_u32 s63, s60, {(18*(p>>1) + 8*(p&1))*1152}")
        a(f"buffer_load_dwordx4 v{V_DOFF}, s[{S_W}:{S_W+3}], s63 offen lds")
    a(f"s_mul_i32 s60, s{S_WAVE}, {2*72*1152}")
    a("s_add_u32 s60, s60, s61")
    a(f"s_lshl_b32 s62, s{S_WAVE}, 11")
    a("s_add_u32 s62, s62, s44")
    for p in range(2):
        a(f"s_add_u32 m0, s62, {65536 + 1024*p}")
        a(f"s_add_u32 s63, s60, {(72*p + 16)*1152}")
        a(f"buffer_load_dwordx4 v{V_DOFF+1}, s[{S_W}:{S_W+3}], s63 offen lds")
    a("s_cmp_lg_u32 s44, 0")
    a("s_cbranch_scc1 k3_common")
    a("s_cmp_ge_u32 s41, 4")
    a("s_cbranch_scc1 k3_common")
    a(f"s_mov_b32 s44, {REGION}")
    a("s_mov_b32 s61, 1024")
    a("s_branch k3_wl")
    a.label("k3_common")
    a("s_mul_i32 s60, s43, 18")
    a("s_add_u32 s60, s60, s49")
    a("s_lshl_b32 s60, s60, 11")
    a(f"s_add_u32 s60, s60, {WS_P}")
    for s in range(8):
        if s == 4:
            a(f"s_cmp_lt_u32 s{S_WAVE}, 4")
            a("s_cbranch_scc1 k3_l4")
        if s:
            a(f"s_add_u32 s60, s60, {P_SLICE}")
        for h in range(2):
            r = PF + 8 * s + 4 * h
            a(f"buffer_load_dwordx4 v[{r}:{r+3}], v{V_ST}, s[{S_WS}:{S_WS+3}], s60 offen offset:{1024*h}")
    a.label("k3_l4")
    a(f"v_and_b32 v{t0}, 31, v{l}")
    a(f"v_lshlrev_b32 v{t2}, 2, v{t0}")
    a("s_lshl_b32 s60, s43, 7")
    a(f"s_add_u32 s60, s60, {WS_R}")
    a(f"buffer_load_dword v4, v{t2}, s[{S_WS}:{S_WS+3}], s60 offen")
    a(f"v_mul_u32_u24 v15, 1152, v{t0}")
    a(f"v_lshrrev_b32 v{t1}, 5, v{l}")
    a(f"v_lshl_add_u32 v15, v{t1}, 3, v15")
    a("s_mul_i32 s56, s43, 36864")
    a("s_lshl_b32 s61, s49, 6")
    a("s_add_u32 s56, s56, s61")
    for i in range(4):
        a(f"buffer_load_dwordx2 v[{XR+2*i}:{XR+2*i+1}], v15, s[4:7], s56 offen offset:{16*i}")
    a("s_mul_i32 s60, s43, 36864")
    a(f"s_add_u32 s60, s60, {WS_O}")
    for s in range(36):
        if s and s % 4 == 0:
            a("s_add_u32 s60, s60, 4096")
        a(f"buffer_load_dwordx4 v[{V_X+4*s}:{V_X+4*s+3}], v{V_ST}, s[{S_WS}:{S_WS+3}], s60 offen offset:{1024*(s%4)}")
    a(f"v_lshlrev_b32 v14, 3, v{t1}")
    a(f"v_lshlrev_b32 v{t1}, 2, v{t1}")
    a(f"v_sub_u32 v{t0}, v{t0}, v{t1}")
    a(f"v_mov_b32 v{t2}, 0x3f80")
    a(f"v_mov_b32 v{t3}, 0x3f800000")
    for aa in range(2):
        for dw in range(4):
            j0 = 2 * dw
            tgt = 16 * aa + (j0 & 3) + 8 * (j0 >> 2)
            r = E + 4 * aa + dw
            a(f"v_cmp_eq_u32 vcc, {tgt}, v{t0}")
            a(f"v_cmp_eq_u32 s[64:65], {tgt+1}, v{t0}")
            a("s_nop 1")
            a(f"v_cndmask_b32 v{r}, 0, v{t2}, vcc")
            a(f"v_cndmask_b32 v{r}, v{r}, v{t3}, s[64:65]")
    a("s_cmp_eq_u32 s48, 1")
    a("s_cselect_b32 s60, 64, 0")
    a(f"v_xor_b32 v{V_RD}, s60, v{V_RD}")
    a(f"v_xor_b32 v{V_RD+1}, s60, v{V_RD+1}")
    stamp(a, 1)
    a("s_waitcnt vmcnt(36)")
    stamp(a, 2)
    a("s_barrier")
    first = True
    for s in range(8):
        if s == 4:
            a(f"s_cmp_lt_u32 s{S_WAVE}, 4")
            a("s_cbranch_scc1 k3_m4")
        for h in range(2):
            r = PF + 8 * s + 4 * h
            c = "0" if first else f"v[{ACC}:{ACC+15}]"
            first = False
            a(f"v_mfma_f32_32x32x16_bf16 v[{ACC}:{ACC+15}], v[{E+4*h}:{E+4*h+3}], v[{r}:{r+3}], {c}")
    a.label("k3_m4")
    a("s_lshl_b32 s61, s49, 6")
    for i in range(4):
        a(f"buffer_load_dwordx2 v[{88+2*i}:{88+2*i+1}], v14, s[{S_B}:{S_B+3}], s61 offen offset:{16*i}")
    for f in range(5):
        a.extend(frag_reads(f, True))
    a("s_nop 1")
    for r in range(16):
        a(f"v_mul_f32 v{ACC+r}, v{ACC+r}, v4")
    a("s_nop 1")
    for h in range(2):
        a(f"v_mfma_f32_32x32x16_bf16 v[{ACC}:{ACC+15}], v[{E+4*h}:{E+4*h+3}], v[{XR+4*h}:{XR+4*h+3}], v[{ACC}:{ACC+15}]")
    stamp(a, 3)
    for f in range(36):
        rem = min(4, 35 - f)
        if f % 4 == 0:
            a(f"s_waitcnt vmcnt({4 + 32 - f}) lgkmcnt({2*rem})")
        else:
            a(f"s_waitcnt lgkmcnt({2*rem})")
        w = V_W + 4 * (f % 6)
        x = V_X + 4 * f
        a(f"v_mfma_f32_32x32x16_bf16 v[{ACC}:{ACC+15}], v[{w}:{w+3}], v[{x}:{x+3}], v[{ACC}:{ACC+15}]")
        if f + 5 < 36:
            a.extend(frag_reads(f + 5, True))
    a("s_waitcnt vmcnt(0)")
    for h in range(2):
        a(f"v_mfma_f32_32x32x16_bf16 v[{ACC}:{ACC+15}], v[{E+4*h}:{E+4*h+3}], v[{88+4*h}:{88+4*h+3}], v[{ACC}:{ACC+15}]")
    a("s_nop 7")
    a("s_nop 3")
    for i in range(8):
        a(f"v_cvt_pk_bf16_f32 v{56+i}, v{ACC+2*i}, v{ACC+2*i+1}")
    for i in range(4):
        a(f"buffer_store_dwordx2 v[{56+2*i}:{56+2*i+1}], v15, s[20:23], s56 offen offset:{16*i}")
    diag_dump(a, 2, 5)
    a.label("k3_end")
    a("s_endpgm")
    return a


def main(out):
    k1 = gen_k1()
    k2 = gen_k2()
    k3 = gen_k3()
    for nm, k in (("k1", k1), ("k2", k2), ("k3", k3)):
        for p in check_hazards(k.lines, nm):
            print(p, file=sys.stderr)
    hdr = open("cdna_kernels/" + NAME + ".s.ref").read().split("; Override launch")[0]
    txt = hdr
    txt += f"; @launch kernel=k1_kernel grid=(256,1,1) block=(256,1,1) lds={2*REGION}\n"
    txt += f"; @launch kernel=k2_kernel grid=(256,1,1) block=(512,1,1) lds={K2_LDS}\n"
    txt += f"; @launch kernel=k3_kernel grid=(256,1,1) block=(320,1,1) lds={2*REGION}\n"
    txt += '.amdgcn_target "amdgcn-amd-amdhsa--gfx950"\n.text\n'
    for k in (k1, k2, k3):
        txt += k.text()
    txt += '.section .rodata,"a"\n'
    txt += descriptor("k1_kernel", 256)
    txt += descriptor("k2_kernel", 256)
    txt += descriptor("k3_kernel", 256)
    open(out, "w").write(txt)


if __name__ == "__main__":
    if "-diag" in sys.argv:
        gen.DIAG = True
        sys.argv.remove("-diag")
    for x in list(sys.argv):
        if x.startswith("-O"):
            k, v = x[2:].split("=")
            OPT[k] = int(v)
            sys.argv.remove(x)
    main(sys.argv[1] if len(sys.argv) > 1 else "cdna_kernels/" + NAME + ".s")
```

```python
import re
import sys
import gen
import gen4
from gen import *
from gen3 import OPT, WSLOT, W_RING, KVSLOT, KV_BASE, CNT_A, CNT_G, K2_LDS, CH_BYTES

NA = 8


def attn_role(a, kid, nw):
    L, T0, T1, T2, T3 = 1, 2, 3, 4, 5
    KAD, K2AD, VAD, THR, GL16, CNT, ONE, CV = 6, 7, 8, 10, 11, 18, 19, 9
    QA, QB = 12, 16
    KA = [20, 28]
    KB = [24, 32]
    VA = [36, 44]
    P = 52
    S = [64, 80]
    C = 96
    O = 112
    UNR = 8
    SK, SM, SD, SSL, STG = 46, 47, 52, 53, 54
    a("s_barrier")
    a(f"v_and_b32 v{L}, 63, v0")
    a(f"v_lshlrev_b32 v{GL16}, 4, v{L}")
    a("s_lshl_b32 s44, s39, 10")
    a(f"s_add_u32 s{SK}, s44, {WS_KV}")
    a(f"s_add_u32 s{SM}, s44, {KV_BASE}")
    _n = [0]

    def kv_dma():
        _n[0] += 1
        lb = f"at_d{_n[0]}"
        return [f"s_mov_b32 m0, s{SM}", f"s_add_u32 s45, s{SK}, 8192",
                f"buffer_load_dwordx4 v{GL16}, s[12:15], s{SK} offen lds",
                f"s_add_u32 m0, s{SM}, 8192", "s_cmp_ge_u32 s39, 4",
                f"buffer_load_dwordx4 v{GL16}, s[12:15], s45 offen lds",
                f"s_cbranch_scc1 {lb}",
                f"s_add_u32 m0, s{SM}, 16384", f"s_add_u32 s45, s{SK}, 16384",
                f"buffer_load_dwordx4 v{GL16}, s[12:15], s45 offen lds",
                f"{lb}:",
                f"s_add_u32 s{SK}, s{SK}, {CH_BYTES}"]

    a.extend(kv_dma())
    a(f"s_add_u32 s{SM}, s{SM}, {KVSLOT}")
    a(f"v_mov_b32 v{THR}, {f32(2.0**OPT.get('thr', 8))}")
    a("s_and_b32 s43, s2, 7")
    a("s_lshl_b32 s43, s43, 3")
    a("s_lshr_b32 s44, s2, 5")
    a("s_add_u32 s43, s43, s44")
    a("s_bfe_u32 s41, s2, 0x20003")
    a("s_lshl_b32 s41, s41, 3")
    a("s_add_u32 s41, s41, s39")
    a(f"s_mul_i32 s48, s43, {Y_MSUB}")
    a(f"v_lshrrev_b32 v{T0}, 5, v{L}")
    a(f"v_lshlrev_b32 v{T0}, 2, v{T0}")
    a(f"v_and_b32 v9, 31, v{L}")
    a("v_lshlrev_b32 v9, 4, v9")
    a("s_mul_i32 s49, s41, 18")
    for t, dim in enumerate((0, 2, 8, 10, 16)):
        dst = QA + t
        if t < 4:
            a(f"v_add_u32 v{T1}, s49, v{T0}")
        else:
            a(f"v_mov_b32 v{T1}, s49")
        if dim:
            a(f"v_add_u32 v{T1}, {dim}, v{T1}")
        a(f"v_lshrrev_b32 v{T2}, 4, v{T1}")
        a(f"v_lshl_add_u32 v{T2}, v{T2}, 10, v9")
        a(f"v_bfe_u32 v{T3}, v{T1}, 2, 1")
        a(f"v_lshl_add_u32 v{T2}, v{T3}, 9, v{T2}")
        a(f"v_bfe_u32 v{T3}, v{T1}, 3, 1")
        a(f"v_lshl_add_u32 v{T2}, v{T3}, 3, v{T2}")
        a(f"v_and_b32 v{T3}, 3, v{T1}")
        a(f"v_lshl_add_u32 v{T2}, v{T3}, 1, v{T2}")
        a(f"buffer_load_dword v{dst}, v{T2}, s[12:15], s48 offen")
    a(f"v_add_u32 v{KAD}, {KV_BASE}, v{GL16}")
    a(f"v_and_b32 v{T0}, 31, v{L}")
    a(f"v_lshlrev_b32 v{K2AD}, 2, v{T0}")
    a(f"v_add_u32 v{K2AD}, {KV_BASE + 1024}, v{K2AD}")
    a(f"v_min_u32 v{T1}, 18, v{T0}")
    a(f"v_subrev_u32 v{T2}, 20, v{T0}")
    a(f"v_cmp_gt_u32 vcc, 8, v{T2}")
    a("s_nop 1")
    a(f"v_cndmask_b32 v{T1}, v{T1}, 0, vcc")
    a(f"v_lshrrev_b32 v{T2}, 5, v{L}")
    a(f"v_mul_u32_u24 v{T2}, 19, v{T2}")
    a(f"v_add_u32 v{T1}, v{T1}, v{T2}")
    a(f"v_lshlrev_b32 v{T1}, 4, v{T1}")
    a(f"v_add_u32 v{VAD}, {KV_BASE + 1152}, v{T1}")
    a(f"v_mov_b32 v{CNT}, {CNT_A}")
    a(f"v_mov_b32 v{ONE}, 1")
    for r in [QB + 1, KB[0] + 1, KB[1] + 1]:
        a(f"v_mov_b32 v{r}, 0")
    for r in range(16):
        a(f"v_mov_b32 v{O+r}, 0")
    a(f"s_mov_b32 s{SSL}, 0")
    a(f"s_mov_b32 s{STG}, {NA}")
    a("s_mov_b32 s51, 0")
    stamp(a, 1)
    a("s_waitcnt vmcnt(0)")
    a("s_mov_b64 exec, 1")
    a(f"ds_add_u32 v{CNT}, v{ONE}")
    a("s_mov_b64 exec, -1")
    a.extend(kv_dma())
    a(f"s_add_u32 s{SM}, s{SM}, {KVSLOT}")
    a.label("at_poll0")
    a(f"ds_read_b32 v{CV}, v{CNT}")
    a("s_waitcnt lgkmcnt(0)")
    a(f"v_readfirstlane_b32 s55, v{CV}")
    a(f"s_cmp_lt_u32 s55, s{STG}")
    a("s_cbranch_scc1 at_poll0")
    if OPT.get("prio", 3):
        a(f"s_setprio {OPT.get('prio', 3)}")
    stamp(a, 2)

    def kread(b, off):
        return [f"ds_read_b128 v[{KA[b]}:{KA[b]+3}], v{KAD} offset:{off}",
                f"ds_read_b32 v{KB[b]}, v{K2AD} offset:{off}"]

    def vread(b, off):
        return [f"ds_read_b128 v[{VA[b]}:{VA[b]+3}], v{VAD} offset:{off}",
                f"ds_read_b128 v[{VA[b]+4}:{VA[b]+7}], v{VAD} offset:{off+608}"]

    def qk1(sb, kb, c):
        s = S[sb]
        return f"v_mfma_f32_32x32x16_bf16 v[{s}:{s+15}], v[{KA[kb]}:{KA[kb]+3}], v[{QA}:{QA+3}], {c}"

    def qk2(sb, kb):
        s = S[sb]
        return f"v_mfma_f32_32x32x8_bf16 v[{s}:{s+15}], v[{KB[kb]}:{KB[kb]+1}], v[{QB}:{QB+1}], v[{s}:{s+15}]"

    def pv(vb, h):
        return (f"v_mfma_f32_32x32x16_bf16 v[{O}:{O+15}], v[{VA[vb]+4*h}:{VA[vb]+4*h+3}], "
                f"v[{P+4*h}:{P+4*h+3}], v[{O}:{O+15}]")

    def rowmax(src, dst):
        out = [f"v_max3_f32 v{dst}, v{src}, v{src+1}, v{src+2}"]
        for i in range(3, 15, 2):
            out.append(f"v_max3_f32 v{dst}, v{dst}, v{src+i}, v{src+i+1}")
        out.append(f"v_max_f32 v{dst}, v{dst}, v{src+15}")
        return out

    def xhalf_max(r, t):
        return [f"v_mov_b32 v{t}, v{r}", "s_nop 1", f"v_permlane32_swap_b32 v{r}, v{t}", "s_nop 1",
                f"v_max_f32 v{r}, v{r}, v{t}"]

    def set_ref():
        out = [f"v_add_f32 v{T0}, {f32(64.0)}, v{T0}", f"v_sub_f32 v{T0}, 0, v{T0}"]
        return out + [f"v_mov_b32 v{C+r}, v{T0}" for r in range(16)]

    a.extend(kread(0, 0))
    a.extend(kread(1, KV_TILE))
    a.extend(vread(0, 0))
    a(f"v_cmp_gt_u32 vcc, 32, v{L}")
    a("s_nop 1")
    a(f"v_cndmask_b32 v{QB}, 0, v{QB}, vcc")
    a("s_waitcnt lgkmcnt(4)")
    a(qk1(0, 0, "0"))
    a(qk2(0, 0))
    a("s_nop 7")
    a("s_nop 3")
    a.extend(rowmax(S[0], T0))
    a.extend(xhalf_max(T0, T1))
    a.extend(set_ref())
    for r in range(16):
        a(f"v_add_f32 v{S[0]+r}, v{S[0]+r}, v{T0}")

    body = []
    for t in range(UNR):
        cur, nx = t % 2, (t + 1) % 2
        s = S[cur]
        ex = lambda r: f"v_exp_f32 v{s+r}, v{s+r}"
        cv = lambda i: f"v_cvt_pk_bf16_f32 v{P+i}, v{s+2*i}, v{s+2*i+1}"
        x = {k: [] for k in range(6)}
        if t == 1:
            x[1] += ["s_waitcnt vmcnt(0)", "s_mov_b64 exec, 1", f"ds_add_u32 v{CNT}, v{ONE}", "s_mov_b64 exec, -1",
                     f"s_add_u32 s{STG}, s{STG}, {NA}"]
            x[4] += [f"s_add_u32 s{SSL}, s{SSL}, 1", f"s_cmp_eq_u32 s{SSL}, 3",
                     f"s_cselect_b32 s{SSL}, 0, s{SSL}", f"s_mov_b32 s{SD}, {KVSLOT}",
                     f"s_cselect_b32 s{SD}, {(-2*KVSLOT) & 0xffffffff}, s{SD}"]
        if t == 4:
            x[1] += [f"ds_read_b32 v{CV}, v{CNT}"]
            x[4] += [f"v_readfirstlane_b32 s55, v{CV}", f"s_cmp_lt_u32 s55, s{STG}",
                     "s_cbranch_scc1 at_poll", "at_poll_ret:"]
        if t == 5:
            x[1] += kv_dma()
            x[4] += [f"s_add_u32 s{SM}, s{SM}, {KVSLOT}", f"s_cmp_ge_u32 s{SM}, {CNT_A}",
                     f"s_cselect_b32 s45, {3*KVSLOT}, 0", f"s_sub_u32 s{SM}, s{SM}, s45"]
        if t == UNR - 2:
            x[2] += [f"v_add_u32 v{KAD}, s{SD}, v{KAD}", f"v_add_u32 v{K2AD}, s{SD}, v{K2AD}"]
        koff = ((t + 2) % UNR) * KV_TILE
        if t == UNR - 1:
            x[2] += [f"v_add_u32 v{VAD}, s{SD}, v{VAD}"]
        voff = ((t + 1) % UNR) * KV_TILE
        b = []
        if t == 0:
            b += ["s_nop 10", f"v_cmp_nlt_f32 vcc, v{O+10}, v{THR}", "s_cmp_lg_u32 vcc_lo, 0",
                  "s_cbranch_scc1 at_rc", "at_rc_ret:"]
        b += ["s_waitcnt lgkmcnt(2)", qk1(nx, nx, f"v[{C}:{C+15}]"), ex(0), ex(1), ex(2), ex(3)]
        if t > 0:
            b += [pv(nx, 1)]
        b += x[1] + [ex(4), cv(0), ex(5), cv(1), ex(6), ex(7), qk2(nx, nx)] + x[2] + kread(cur, koff)
        b += [ex(8), cv(2), ex(9), cv(3), ex(10), ex(11), "s_waitcnt lgkmcnt(2)", pv(cur, 0)]
        b += vread(nx, voff) + x[4]
        b += [ex(12), cv(4), ex(13), cv(5), ex(14), ex(15), cv(6), cv(7)]
        if t == UNR - 1:
            b += ["s_add_u32 s51, s51, 1", f"s_cmp_lt_u32 s51, {64 // UNR}", pv(cur, 1)]
        body += b
    for p in check_hazards(body + ["s_nop 0"] + body, "attn-loop"):
        print(p, file=sys.stderr)
    stamp(a, 3)
    a.label("at_loop")
    a.extend(body)
    a("s_cbranch_scc1 at_loop")
    stamp(a, 4)
    a("s_mov_b32 s50, 0")
    a.label("at_finish")
    a("s_nop 7")
    a("s_nop 3")

    def recentre(with_s):
        out = [f"v_frexp_exp_i32_f32 v{T0}, v{O+10}",
               f"v_add_u32 v{T0}, 64, v{T0}",
               f"v_mov_b32 v{T1}, v{T0}", "s_nop 1",
               f"v_permlane32_swap_b32 v{T0}, v{T1}", "s_nop 1",
               f"v_sub_u32 v{T1}, 0, v{T0}",
               f"v_cvt_f32_i32 v{T2}, v{T0}"]
        for r in range(11):
            out.append(f"v_ldexp_f32 v{O+r}, v{O+r}, v{T1}")
        if with_s:
            for r in range(16):
                out.append(f"v_sub_f32 v{C+r}, v{C+r}, v{T2}")
                out.append(f"v_sub_f32 v{S[0]+r}, v{S[0]+r}, v{T2}")
        return out

    a.extend(recentre(False))
    a(f"v_add_f32 v{T0}, abs(v{O}), abs(v{O+1})")
    for r in range(2, 11):
        a(f"v_add_f32 v{T0}, v{T0}, abs(v{O+r})")
    a(f"v_mov_b32 v{T1}, 0x7f800000")
    a(f"v_cmp_nlt_f32 vcc, v{T0}, v{T1}")
    a("s_cmp_lg_u32 s50, 0")
    a("s_cbranch_scc1 at_store")
    a("s_cmp_lg_u64 vcc, 0")
    a("s_cbranch_scc1 at_fallback")
    a.label("at_store")
    a(f"v_mov_b32 v{T0}, v{O+10}")
    a(f"v_mov_b32 v{T1}, v{O+10}")
    a("s_nop 1")
    a(f"v_permlane32_swap_b32 v{T0}, v{T1}")
    a("s_nop 1")
    a(f"v_rcp_f32 v{T0}, v{T0}")
    a("s_nop 0")
    for r in range(10):
        a(f"v_mul_f32 v{O+r}, v{O+r}, v{T0}")
    for i in range(5):
        a(f"v_cvt_pk_bf16_f32 v{P+i}, v{O+2*i}, v{O+2*i+1}")
    a("s_mul_i32 s44, s43, 36")
    a("s_add_u32 s45, s44, s41")
    a("s_lshl_b32 s45, s45, 10")
    a(f"s_add_u32 s45, s45, {WS_O}")
    a(f"buffer_store_dwordx4 v[{P}:{P+3}], v{GL16}, s[12:15], s45 offen")
    a("s_lshr_b32 s45, s41, 3")
    a("s_add_u32 s45, s45, s44")
    a("s_add_u32 s45, s45, 32")
    a("s_lshl_b32 s45, s45, 10")
    a(f"s_add_u32 s45, s45, {WS_O}")
    a("s_bfe_u32 s46, s41, 0x10001")
    a("s_lshl_b32 s46, s46, 9")
    a("s_add_u32 s45, s45, s46")
    a("s_and_b32 s46, s41, 1")
    a("s_lshl_b32 s46, s46, 2")
    a("s_add_u32 s45, s45, s46")
    a("s_bfe_u32 s46, s41, 0x10002")
    a("s_lshl_b32 s46, s46, 3")
    a("s_add_u32 s45, s45, s46")
    a(f"v_cmp_gt_u32 vcc, 32, v{L}")
    a("s_and_saveexec_b64 s[64:65], vcc")
    a(f"buffer_store_dword v{P+4}, v{GL16}, s[12:15], s45 offen")
    diag_dump(a, kid, nw, s_wave=39)
    a("s_endpgm")
    a.label("at_poll")
    if OPT.get("sleep", 2):
        a(f"s_sleep {OPT.get('sleep', 2)}")
    a(f"ds_read_b32 v{CV}, v{CNT}")
    a("s_waitcnt lgkmcnt(0)")
    a(f"v_readfirstlane_b32 s55, v{CV}")
    a(f"s_cmp_lt_u32 s55, s{STG}")
    a("s_cbranch_scc1 at_poll")
    a("s_branch at_poll_ret")
    a.label("at_rc")
    a("s_nop 7")
    a.extend(recentre(True))
    a("s_nop 1")
    a("s_branch at_rc_ret")
    a.label("at_fallback")
    a("s_mov_b32 s50, 1")
    a("s_waitcnt vmcnt(0) lgkmcnt(0)")
    a(f"v_and_b32 v{T0}, 31, v{L}")
    a(f"v_lshlrev_b32 v{K2AD}, 2, v{T0}")
    a(f"v_add_u32 v{K2AD}, 1024, v{K2AD}")
    a(f"v_min_u32 v{T1}, 18, v{T0}")
    a(f"v_lshrrev_b32 v{T2}, 5, v{L}")
    a(f"v_mul_u32_u24 v{T2}, 19, v{T2}")
    a(f"v_add_u32 v{T1}, v{T1}, v{T2}")
    a(f"v_lshlrev_b32 v{T1}, 4, v{T1}")
    a(f"v_add_u32 v{VAD}, 1152, v{T1}")
    a(f"v_mov_b32 v{T0}, 0xff800000")
    a("s_mov_b32 s51, 0")
    a(f"s_mov_b32 s{SK}, {WS_KV}")
    gk = [f"buffer_load_dwordx4 v[{KA[0]}:{KA[0]+3}], v{GL16}, s[12:15], s{SK} offen",
          f"buffer_load_dword v{KB[0]}, v{K2AD}, s[12:15], s{SK} offen"]
    gv = [f"buffer_load_dwordx4 v[{VA[0]}:{VA[0]+3}], v{VAD}, s[12:15], s{SK} offen",
          f"buffer_load_dwordx4 v[{VA[0]+4}:{VA[0]+7}], v{VAD}, s[12:15], s{SK} offen offset:608"]
    a.label("at_fb1")
    a.extend(gk)
    a("s_waitcnt vmcnt(0)")
    a(qk1(0, 0, "0"))
    a(qk2(0, 0))
    a(f"s_add_u32 s{SK}, s{SK}, {KV_TILE}")
    a("s_nop 7")
    a("s_nop 3")
    a.extend(rowmax(S[0], T1))
    a(f"v_max_f32 v{T0}, v{T0}, v{T1}")
    a("s_add_u32 s51, s51, 1")
    a("s_cmp_lt_u32 s51, 64")
    a("s_cbranch_scc1 at_fb1")
    a.extend(xhalf_max(T0, T1))
    a.extend(set_ref())
    for r in range(16):
        a(f"v_mov_b32 v{O+r}, 0")
    a("s_mov_b32 s51, 0")
    a(f"s_mov_b32 s{SK}, {WS_KV}")
    a.label("at_fb2")
    a.extend(gk + gv)
    a("s_waitcnt vmcnt(0)")
    a(qk1(0, 0, f"v[{C}:{C+15}]"))
    a(qk2(0, 0))
    a(f"s_add_u32 s{SK}, s{SK}, {KV_TILE}")
    a("s_nop 7")
    a("s_nop 3")
    for r in range(16):
        a(f"v_exp_f32 v{S[0]+r}, v{S[0]+r}")
    a("s_nop 0")
    for i in range(8):
        a(f"v_cvt_pk_bf16_f32 v{P+i}, v{S[0]+2*i}, v{S[0]+2*i+1}")
    a("s_nop 1")
    a(pv(0, 0))
    a(pv(0, 1))
    a("s_add_u32 s51, s51, 1")
    a("s_cmp_lt_u32 s51, 64")
    a("s_nop 7")
    a("s_cbranch_scc1 at_fb2")
    a("s_branch at_finish")


def g2_role(a, kid, nw):
    RDL, RD0, RD1, SY, ONE, TV, TCH = 5, 6, 7, 15, 14, 13, 8
    WR, ACS, ACA, ACB, X = 16, 32, 48, 80, 112
    SROW, STY, SKC = 45, 48, 49
    SCA, SCS = 50, 58
    SRS, SWS_ = 46, 47
    SX, SXT = 52, 44
    SC, SSP3 = 55, 56
    SPB = 63
    a(f"v_mov_b32 v{SY}, {CNT_G}")
    a(f"v_mov_b32 v{TV}, 0")
    a(f"v_mov_b32 v{ONE}, {CNT_A}")
    a(f"ds_write_b32 v{SY}, v{TV}")
    a(f"ds_write_b32 v{ONE}, v{TV}")
    a("s_waitcnt lgkmcnt(0)")
    a("s_barrier")
    if OPT.get("noG"):
        a("s_endpgm")
    if OPT.get("gprio"):
        a(f"s_setprio {OPT['gprio']}")
    emit_lane_consts(a, native=True)
    a(f"s_and_b32 s{S_WAVE}, s{S_WAVE}, 3")
    a(f"s_mul_i32 s{S_W6144}, s{S_WAVE}, 6144")
    a(f"s_mov_b32 s{S_TGT}, 0")
    a("s_bfe_u32 s41, s2, 0x20005")
    a("s_and_b32 s42, s2, 7")
    a("s_lshl_b32 s42, s42, 1")
    a("s_lshr_b32 s60, s2, 7")
    a("s_add_u32 s42, s42, s60")
    a("s_bfe_u32 s51, s2, 0x20003")
    a("s_lshl_b32 s43, s42, 2")
    a(f"s_add_u32 s43, s43, s{S_WAVE}")
    a("s_mov_b32 s59, 1152")
    emit_dma_voffsets(a, 59)
    a(f"v_mov_b32 v{ONE}, 1")
    a("s_mul_i32 s60, s41, 1152")
    a(f"s_mul_i32 s61, s{S_WAVE}, 48")
    a("s_add_u32 s60, s60, s61")
    a(f"s_mul_i32 s{SROW}, s60, 1152")
    a(f"s_lshl_b32 s{SCA}, s51, 8")
    a(f"s_and_b32 s{SCS}, s51, 1")
    a(f"s_lshl_b32 s{SCS}, s{SCS}, 6")
    a(f"s_add_u32 s{SCS}, s{SCS}, 1024")
    a(f"s_lshr_b32 s{SSP3}, s51, 1")
    a(f"s_mul_i32 s{SSP3}, s{SSP3}, 3")
    a(f"s_mov_b32 s{STY}, 0")
    a(f"s_mov_b32 s{SKC}, 0")
    a(f"s_mov_b32 s{SWS_}, s{S_W6144}")
    a(f"s_mov_b32 s{SRS}, 0")

    def dma_chunk():
        out = [[f"s_add_u32 s62, s{SCA}, 128",
                f"s_cmp_eq_u32 s{STY}, 0", f"s_cselect_b32 s62, s{SCA}, s62"],
               [f"s_cmp_eq_u32 s{STY}, 1", f"s_cselect_b32 s62, s{SCS}, s62",
                f"s_add_u32 s62, s62, s{SROW}"]]
        for gmm in range(2):
            out.append([f"s_add_u32 m0, s{SWS_}, {gmm*3072}", f"s_add_u32 s{S_T1}, s62, {24*gmm*1152}"])
            for i in range(3):
                out.append([f"buffer_load_dwordx4 v{V_DOFF+i}, s[{S_W}:{S_W+3}], s{S_T1} offen offset:{1024*i} lds"])
        out += [[f"s_add_u32 s{SWS_}, s{SWS_}, {WSLOT}", f"s_cmp_ge_u32 s{SWS_}, {W_RING}",
                 f"s_cselect_b32 s{S_T1}, {W_RING}, 0", f"s_sub_u32 s{SWS_}, s{SWS_}, s{S_T1}"],
                [f"s_sub_u32 s62, s{SKC}, s{SSP3}", "s_cmp_lt_u32 s62, 3", "s_cselect_b32 s62, 1, 2"],
                [f"s_cmp_eq_u32 s{STY}, 0", "s_cselect_b32 s62, s62, 2"],
                [f"s_cmp_eq_u32 s{STY}, 2", f"s_cselect_b32 s{STY}, 0, s62",
                 f"s_cselect_b32 s62, {192*1152}, 0", f"s_addc_u32 s{SKC}, s{SKC}, 0"],
                [f"s_add_u32 s{SROW}, s{SROW}, s62",
                 f"s_cmp_ge_u32 s{SKC}, 6", f"s_cselect_b32 s{SROW}, {OOB}, s{SROW}"]]
        return out

    def xload(s):
        out = []
        if s and s % 4 == 0:
            out.append(f"s_add_u32 s{SX}, s{SX}, 4096")
        out.append(f"buffer_load_dwordx4 v[{X+4*s}:{X+4*s+3}], v{V_ST}, s[{S_WS}:{S_WS+3}], s{SX} offen offset:{1024*(s%4)}")
        if s == 11:
            out.append(f"s_add_u32 s{SX}, s{SX}, 4096")
        return out

    a("s_mul_i32 s60, s43, 324")
    a("s_mul_i32 s61, s41, 72")
    a("s_add_u32 s60, s60, s61")
    a("s_add_u32 s60, s60, 36")
    a(f"s_lshl_b32 s{SX}, s60, 10")
    a(f"v_min_u32 v{TCH}, 23, v{V_L}")
    a(f"v_lshlrev_b32 v{TCH}, 7, v{TCH}")
    a("s_mul_i32 s60, s51, 3072")
    a(f"s_add_u32 s{SXT}, s{SX}, s60")
    a(f"s_add_u32 s{SXT}, s{SXT}, 12288")
    for r in range(80):
        a(f"v_mov_b32 v{ACS+r}, 0")
    a(f"s_mul_i32 s60, s41, {P_SLICE}")
    a("s_mul_i32 s61, s43, 36864")
    a("s_add_u32 s60, s60, s61")
    a(f"s_add_u32 s{SPB}, s60, {WS_P}")
    a(f"s_mov_b32 s{SC}, 0")
    if OPT.get("gwait", 1):
        a(f"v_mov_b32 v10, {CNT_A}")
        a.label("g_wait_a")
        a(f"ds_read_b32 v{TV}, v10")
        a("s_waitcnt lgkmcnt(0)")
        a(f"v_readfirstlane_b32 s60, v{TV}")
        a(f"s_cmp_lt_u32 s60, {NA}")
        a("s_cbranch_scc1 g_wait_a")
    for c in range(3):
        for grp in dma_chunk():
            a.extend(grp)
    for s in range(12):
        a.extend(xload(s))
    stamp(a, 1)

    def reads(sub, s, buf):
        d = WR + 4 * buf
        base = RD0 if sub == 0 else RD1
        return [f"ds_read_b64_tr_b16 v[{d}:{d+1}], v{base} offset:{s*2048}",
                f"ds_read_b64_tr_b16 v[{d+2}:{d+3}], v{base} offset:{s*2048+1024}"]

    def sync(tag, n):
        return [f"s_waitcnt vmcnt({n}) lgkmcnt(0)",
                "s_mov_b64 exec, 1", f"ds_add_u32 v{SY}, v{ONE}", "s_mov_b64 exec, -1",
                f"s_add_u32 s{S_TGT}, s{S_TGT}, 4",
                f"v_add_u32 v{RD0}, s{SRS}, v{RDL}",
                f"v_xor_b32 v{RD1}, 64, v{RD0}",
                f"s_add_u32 s{SRS}, s{SRS}, {WSLOT}", f"s_cmp_ge_u32 s{SRS}, {W_RING}",
                f"s_cselect_b32 s{SRS}, 0, s{SRS}",
                f"g_p{tag}:",
                f"ds_read_b32 v{TV}, v{SY}", "s_waitcnt lgkmcnt(0)",
                f"v_readfirstlane_b32 s{S_TGT+2}, v{TV}",
                f"s_cmp_ge_u32 s{S_TGT+2}, s{S_TGT}", f"s_cbranch_scc0 g_p{tag}"]

    def unit(kind):
        acc = {"S": ACS, "A": ACA, "B": ACB}[kind]
        nsub = 1 if kind == "S" else 2
        out = sync(kind, 12 if kind == "B" else 24)
        seq = [(sub, s) for s in range(12) for sub in range(nsub)]
        n = len(seq)
        depth = 3 if nsub == 1 else 2
        fill = {i: [] for i in range(n)}
        d = dma_chunk()
        if kind == "A":
            d = d + [[f"buffer_load_dword v12, v{TCH}, s[{S_WS}:{S_WS+3}], s{SXT} offen",
                      f"s_add_u32 s{SXT}, s{SXT}, 12288"]]
        for k, x in enumerate(d):
            fill[k * (n - 1) // len(d)] += x
        for i in range(depth):
            out += reads(seq[i][0], seq[i][1], i % 4)
        issued = 0
        for i, (sub, s) in enumerate(seq):
            vw = ""
            if kind == "A" and sub == 0:
                vw = f"vmcnt({11 - s + issued}) "
            if nsub == 2:
                if i % 2 == 0:
                    if i + 2 < n:
                        out += reads(seq[i + 2][0], seq[i + 2][1], (i + 2) % 4)
                        out += reads(seq[i + 3][0], seq[i + 3][1], (i + 3) % 4)
                        out.append(f"s_waitcnt {vw}lgkmcnt(4)")
                    else:
                        out.append(f"s_waitcnt {vw}lgkmcnt(0)")
            else:
                rem = min(depth - 1, n - 1 - i)
                out.append(f"s_waitcnt lgkmcnt({2*rem})")
            w = WR + 4 * (i % 4)
            x = X + 4 * s
            t = acc + 16 * sub
            out.append(f"v_mfma_f32_32x32x16_bf16 v[{t}:{t+15}], v[{w}:{w+3}], v[{x}:{x+3}], v[{t}:{t+15}]")
            if nsub == 1 and i + depth < n:
                out += reads(seq[i + depth][0], seq[i + depth][1], (i + depth) % 4)
            out += fill[i]
            issued += sum(1 for y in fill[i] if y.startswith("buffer_"))
            if kind == "B" and sub == 1:
                out += xload(s)
        return out

    def store_tile(t, soff, imm0=0):
        out = [f"v_cvt_pk_bf16_f32 v{t+i}, v{t+2*i}, v{t+2*i+1}" for i in range(8)]
        out += [f"buffer_store_dwordx4 v[{t}:{t+3}], v{V_ST}, s[{S_WS}:{S_WS+3}], s{soff} offen offset:{imm0}",
                f"buffer_store_dwordx4 v[{t+4}:{t+7}], v{V_ST}, s[{S_WS}:{S_WS+3}], s{soff} offen offset:{imm0+1024}"]
        return out

    uS, uA, uB = unit("S"), unit("A"), unit("B")
    for p in check_hazards(uA + uS + uB + uA, "g2-units"):
        print(p, file=sys.stderr)
    stamp(a, 3)
    a.label("g_kc")
    a.extend(uA)
    a(f"s_sub_u32 s60, s{SC}, s{SSP3}")
    a("s_cmp_lt_u32 s60, 3")
    a("s_cbranch_scc0 g_nos")
    a.extend(uS)
    a.label("g_nos")
    a(f"s_cmp_eq_u32 s{SC}, 5")
    a(f"s_cselect_b32 s{SX}, {OOB}, s{SX}")
    a.extend(uB)
    a(f"s_add_u32 s{SC}, s{SC}, 1")
    a(f"s_cmp_lt_u32 s{SC}, 6")
    a("s_cbranch_scc1 g_kc")
    stamp(a, 4)
    a("s_load_dwordx2 s[24:25], s[0:1], 0")
    a("s_load_dwordx2 s[26:27], s[0:1], 32")
    a("s_lshl_b32 s60, s51, 13")
    a(f"s_add_u32 s60, s60, s{SPB}")
    a("s_add_u32 s61, s60, 4096")
    a("s_lshr_b32 s62, s51, 1")
    a("s_add_u32 s62, s62, s41")
    a(f"s_mul_i32 s62, s62, {P_SLICE}")
    a(f"s_add_u32 s62, s62, s{SPB}")
    a("s_and_b32 s64, s51, 1")
    a("s_lshl_b32 s64, s64, 11")
    a("s_add_u32 s62, s62, s64")
    a("s_add_u32 s62, s62, 32768")
    a.extend(store_tile(ACS, 62))
    a.extend(store_tile(ACA, 60, 0))
    a.extend(store_tile(ACA + 16, 60, 2048))
    a.extend(store_tile(ACB, 61, 0))
    a.extend(store_tile(ACB + 16, 61, 2048))
    if OPT.get("k3pf", 1):
        a("s_lshr_b32 s60, s2, 3")
        a("s_lshl_b32 s60, s60, 2")
        a(f"s_add_u32 s60, s60, s{S_WAVE}")
        a(f"v_lshlrev_b32 v10, 7, v{V_L}")
        a(f"v_min_u32 v11, {17*128}, v10")
        a(f"v_min_u32 v10, {40*128}, v10")
        a(f"s_mul_i32 s61, s60, {41*128}")
        a(f"s_mul_i32 s62, s60, {18*128}")
        a("s_and_b32 s60, s2, 7")
        a("s_mul_i32 s60, s60, 294912")
        a("s_add_u32 s62, s62, s60")
        a("s_waitcnt lgkmcnt(0)")
        srd(a, 4, 24, X_BYTES)
        srd(a, 20, 26, 576 * 576 * 2)
        a("buffer_load_dword v12, v10, s[20:23], s61 offen")
        a("buffer_load_dword v12, v11, s[4:7], s62 offen")
    diag_dump(a, kid, nw, s_wave=39)
    a("s_endpgm")


def gen_k2():
    a = Asm()
    kernel_header(a, "k2_kernel")
    a("s_cmp_ge_u32 s2, 256")
    a("s_cbranch_scc1 k2_end")
    stamp(a, 0)
    stamp_rt(a, 13)
    a("s_load_dwordx2 s[32:33], s[0:1], 64")
    a("s_load_dwordx2 s[36:37], s[0:1], 96")
    a("v_lshrrev_b32 v2, 6, v0")
    a("s_nop 0")
    a("v_readfirstlane_b32 s39, v2")
    a("s_waitcnt lgkmcnt(0)")
    srd(a, S_WS, 36, WS_BYTES)
    srd(a, S_W, 32, 4608 * 576 * 2)
    a(f"s_cmp_ge_u32 s39, {NA}")
    a("s_cbranch_scc1 k2_g")
    attn_role(a, 1, 12)
    a.label("k2_g")
    g2_role(a, 1, 12)
    a.label("k2_end")
    a("s_endpgm")
    return a


def main(out):
    k1 = gen4.gen_k1()
    k1.lines = [ln + " sc1" if ln.startswith("buffer_store_dwordx4") else ln for ln in k1.lines]
    k2 = gen_k2()
    k3 = gen4.gen_k3()
    for nm, k in (("k1", k1), ("k2", k2), ("k3", k3)):
        for p in check_hazards(k.lines, nm):
            print(p, file=sys.stderr)
    hdr = open("cdna_kernels/" + NAME + ".s.ref").read().split("; Override launch")[0]
    txt = hdr
    txt += f"; @launch kernel=k1_kernel grid=(256,1,1) block=(256,1,1) lds={2*REGION}\n"
    txt += f"; @launch kernel=k2_kernel grid=(256,1,1) block=(768,1,1) lds={K2_LDS}\n"
    txt += f"; @launch kernel=k3_kernel grid=(256,1,1) block=(320,1,1) lds={2*REGION}\n"
    txt += '.amdgcn_target "amdgcn-amd-amdhsa--gfx950"\n.text\n'
    for k in (k1, k2, k3):
        txt += k.text()
    txt += '.section .rodata,"a"\n'
    txt += descriptor("k1_kernel", 256)
    txt += descriptor("k2_kernel", 160)
    txt += descriptor("k3_kernel", 256)
    open(out, "w").write(txt)


if __name__ == "__main__":
    if "-diag" in sys.argv:
        gen.DIAG = True
        sys.argv.remove("-diag")
    for x in list(sys.argv):
        if x.startswith("-O"):
            k, v = x[2:].split("=")
            OPT[k] = int(v)
            sys.argv.remove(x)
    main(sys.argv[1] if len(sys.argv) > 1 else "cdna_kernels/" + NAME + ".s")
```

```python
import sys
import gen
import gen4
import gen5
from gen import *
from gen3 import OPT, K2_LDS
from gen4 import WS_R

XREG = REGION
K3_LDS = REGION + 36864
IMG_ROW = 400
IMG = 64 * IMG_ROW


def gen_k3():
    a = Asm()
    kernel_header(a, "k3_kernel")
    E, RG, PP, PQ = 16, 24, 48, 80
    AC = [112, 128, 144]
    X = 160
    FX, FB, FA = 232, 240, 252
    GX, GB, GA = 244, 248, 254
    dbgw = OPT.get("k3dbg")
    a("s_cmp_ge_u32 s2, 256")
    a("s_cbranch_scc1 k3_end")
    stamp(a, 0)
    stamp_rt(a, 13)
    a("s_load_dwordx2 s[24:25], s[0:1], 0")
    a("s_load_dwordx2 s[32:33], s[0:1], 32")
    a("s_load_dwordx4 s[28:31], s[0:1], 72")
    a("s_load_dwordx2 s[36:37], s[0:1], 96")
    emit_lane_consts(a, native=True)
    a("s_and_b32 s42, s2, 7")
    a("s_lshl_b32 s42, s42, 2")
    a("s_lshr_b32 s60, s2, 6")
    a("s_add_u32 s42, s42, s60")
    a("s_bfe_u32 s41, s2, 0x30003")
    a("s_lshl_b32 s43, s42, 1")
    a(f"s_lshr_b32 s62, s{S_WAVE}, 1")
    a("s_add_u32 s43, s43, s62")
    a(f"s_and_b32 s48, s{S_WAVE}, 1")
    a("s_lshl_b32 s49, s41, 1")
    a("s_add_u32 s49, s49, s48")
    a("s_lshr_b32 s60, s41, 1")
    a("s_cmp_eq_u32 s60, s62")
    a("s_cselect_b32 s50, 1, 0")
    l = V_L
    t0, t1, t2, t3 = 10, 11, 12, 13
    D0, D1, D2, D3 = 2, 3, 4, 14
    a(f"v_lshrrev_b32 v{t0}, 3, v{l}")
    a(f"v_and_b32 v{t1}, 7, v{l}")
    a(f"v_lshlrev_b32 v{FA+1}, 4, v{t1}")
    a(f"v_bfe_u32 v{t2}, v{l}, 4, 1")
    a(f"v_lshlrev_b32 v{t2}, 2, v{t2}")
    a(f"v_xor_b32 v{t1}, v{t1}, v{t2}")
    a(f"v_lshlrev_b32 v{t1}, 4, v{t1}")
    a(f"v_mul_u32_u24 v{t2}, 1152, v{t0}")
    a(f"v_add_u32 v{FA}, v{t2}, v{FA+1}")
    a(f"v_add_u32 v{D0}, v{t2}, v{t1}")
    a(f"v_lshrrev_b32 v{t2}, 1, v{t0}")
    a(f"v_mul_u32_u24 v{t2}, 18, v{t2}")
    a(f"v_and_b32 v{t3}, 1, v{t0}")
    a(f"v_add_u32 v{t2}, v{t2}, v{t3}")
    a(f"v_mul_u32_u24 v{t2}, 1152, v{t2}")
    a(f"v_add_u32 v{D1}, v{t2}, v{t1}")
    a(f"v_lshrrev_b32 v{t0}, 2, v{l}")
    a(f"v_and_b32 v{t1}, 3, v{l}")
    a(f"v_lshlrev_b32 v{GA+1}, 4, v{t1}")
    a(f"v_mul_u32_u24 v{t2}, 1152, v{t0}")
    a(f"v_add_u32 v{D2}, v{t2}, v{GA+1}")
    a(f"v_lshrrev_b32 v{t2}, 1, v{t0}")
    a(f"v_mul_u32_u24 v{t2}, 18, v{t2}")
    a(f"v_and_b32 v{t3}, 1, v{t0}")
    a(f"v_add_u32 v{t2}, v{t2}, v{t3}")
    a(f"v_mul_u32_u24 v{t2}, 1152, v{t2}")
    a(f"v_add_u32 v{D3}, v{t2}, v{GA+1}")
    a("s_waitcnt lgkmcnt(0)")
    stamp(a, 7)
    srd(a, S_WS, 36, WS_BYTES)
    srd(a, S_W, 32, 576 * 576 * 2)
    srd(a, 4, 24, X_BYTES)
    srd(a, S_B, 28, 1152)
    srd(a, 20, 30, X_BYTES)
    if dbgw:
        a("s_waitcnt vmcnt(0)")
    stamp(a, 8)
    a("s_lshl_b32 s61, s41, 7")
    a(f"s_mul_i32 s60, s{S_WAVE}, {8*18*1152}")
    a("s_add_u32 s60, s60, s61")
    a(f"s_lshl_b32 s62, s{S_WAVE}, 14")
    for p in range(16):
        a(f"s_add_u32 m0, s62, {1024*p}")
        a(f"s_add_u32 s63, s60, {(18*(p>>1) + 8*(p&1))*1152}")
        a(f"buffer_load_dwordx4 v{D0}, s[{S_W}:{S_W+3}], s63 offen lds")
    a(f"s_mul_i32 s60, s{S_WAVE}, {2*72*1152}")
    a("s_add_u32 s60, s60, s61")
    a(f"s_lshl_b32 s62, s{S_WAVE}, 11")
    for p in range(2):
        a(f"s_add_u32 m0, s62, {65536 + 1024*p}")
        a(f"s_add_u32 s63, s60, {(72*p + 16)*1152}")
        a(f"buffer_load_dwordx4 v{D1}, s[{S_W}:{S_W+3}], s63 offen lds")
    if dbgw:
        a("s_waitcnt vmcnt(0)")
    stamp(a, 9)
    a("s_cmp_ge_u32 s41, 4")
    a("s_cbranch_scc1 k3_noxl")
    a("s_and_b32 s51, s41, 1")
    a("s_lshl_b32 s51, s51, 6")
    a("s_add_u32 s51, s51, 1024")
    a(f"s_mul_i32 s60, s{S_WAVE}, {8*18*1152}")
    a("s_add_u32 s60, s60, s51")
    a(f"s_lshl_b32 s62, s{S_WAVE}, 13")
    for p in range(8):
        a(f"s_add_u32 m0, s62, {XREG + 1024*p}")
        a(f"s_add_u32 s63, s60, {18*p*1152}")
        a(f"buffer_load_dwordx4 v{D2}, s[{S_W}:{S_W+3}], s63 offen lds")
    a(f"s_mul_i32 s60, s{S_WAVE}, {144*1152}")
    a("s_add_u32 s60, s60, s51")
    a(f"s_lshl_b32 s62, s{S_WAVE}, 10")
    a(f"s_add_u32 m0, s62, {XREG + 32768}")
    a(f"s_add_u32 s63, s60, {16*1152}")
    a(f"buffer_load_dwordx4 v{D3}, s[{S_W}:{S_W+3}], s63 offen lds")
    a("s_lshl_b32 s60, s42, 1")
    a("s_lshr_b32 s62, s41, 1")
    a("s_add_u32 s60, s60, s62")
    a("s_mul_i32 s58, s60, 36864")
    a(f"s_mul_i32 s62, s{S_WAVE}, 9216")
    a("s_add_u32 s58, s58, s62")
    a("s_add_u32 s58, s58, s51")
    a(f"buffer_load_dwordx4 v[{GX}:{GX+3}], v{D2}, s[4:7], s58 offen")
    a(f"buffer_load_dwordx4 v[{GB}:{GB+3}], v{GA+1}, s[{S_B}:{S_B+3}], s51 offen")
    a.label("k3_noxl")
    if dbgw:
        a("s_waitcnt vmcnt(0)")
    stamp(a, 10)
    a("s_mul_i32 s60, s43, 36864")
    a("s_mul_i32 s62, s48, 18432")
    a("s_add_u32 s60, s60, s62")
    a(f"s_add_u32 s60, s60, {WS_O}")
    for s in range(18):
        if s and s % 4 == 0:
            a("s_add_u32 s60, s60, 4096")
        a(f"buffer_load_dwordx4 v[{X+4*s}:{X+4*s+3}], v{V_ST}, s[{S_WS}:{S_WS+3}], s60 offen offset:{1024*(s%4)}")
    if dbgw:
        a("s_waitcnt vmcnt(0)")
    stamp(a, 11)
    a("s_mul_i32 s56, s42, 73728")
    a(f"s_mul_i32 s60, s{S_WAVE}, 18432")
    a("s_add_u32 s56, s56, s60")
    a("s_add_u32 s56, s56, s61")
    a("s_add_u32 s57, s56, 9216")
    a(f"buffer_load_dwordx4 v[{FX}:{FX+3}], v{FA}, s[4:7], s56 offen")
    a(f"buffer_load_dwordx4 v[{FX+4}:{FX+7}], v{FA}, s[4:7], s57 offen")
    a(f"buffer_load_dwordx4 v[{FB}:{FB+3}], v{FA+1}, s[{S_B}:{S_B+3}], s61 offen")
    a("s_mul_i32 s44, s43, 18")
    a("s_add_u32 s45, s44, 16")
    a("s_add_u32 s44, s44, s49")
    a("s_lshl_b32 s44, s44, 11")
    a(f"s_add_u32 s44, s44, {WS_P}")
    a("s_and_b32 s62, s41, 1")
    a("s_add_u32 s45, s45, s62")
    a("s_lshl_b32 s45, s45, 11")
    a(f"s_mul_i32 s62, s48, {4*P_SLICE}")
    a("s_add_u32 s45, s45, s62")
    a(f"s_add_u32 s45, s45, {WS_P}")
    a("s_cmp_eq_u32 s50, 0")
    a(f"s_cselect_b32 s45, {OOB}, s45")
    a(f"v_and_b32 v{t0}, 31, v{l}")
    a(f"v_lshlrev_b32 v8, 2, v{t0}")
    a("s_lshl_b32 s46, s43, 7")
    a(f"s_add_u32 s46, s46, {WS_R}")
    pfill = [[f"buffer_load_dword v15, v8, s[{S_WS}:{S_WS+3}], s46 offen"]]
    for base, sreg in ((PP, 44), (PQ, 45)):
        for s in range(4):
            for h in range(2):
                r = base + 8 * s + 4 * h
                g = [f"buffer_load_dwordx4 v[{r}:{r+3}], v{V_ST}, s[{S_WS}:{S_WS+3}], s{sreg} offen offset:{1024*h}"]
                if h == 1:
                    g.append(f"s_add_u32 s{sreg}, s{sreg}, {P_SLICE}")
                pfill.append(g)
    a(f"v_lshrrev_b32 v{t1}, 5, v{l}")
    a(f"v_lshlrev_b32 v{t1}, 2, v{t1}")
    a(f"v_sub_u32 v{t0}, v{t0}, v{t1}")
    a(f"v_mov_b32 v{t2}, 0x3f80")
    a(f"v_mov_b32 v{t3}, 0x3f800000")
    for aa in range(2):
        for dw in range(4):
            j0 = 2 * dw
            tgt = 16 * aa + (j0 & 3) + 8 * (j0 >> 2)
            r = E + 4 * aa + dw
            a(f"v_cmp_eq_u32 vcc, {tgt}, v{t0}")
            a(f"v_cmp_eq_u32 s[64:65], {tgt+1}, v{t0}")
            a("s_nop 1")
            a(f"v_cndmask_b32 v{r}, 0, v{t2}, vcc")
            a(f"v_cndmask_b32 v{r}, v{r}, v{t3}, s[64:65]")
    a("s_mul_i32 s60, s48, 36864")
    a(f"v_add_u32 v{V_RD}, s60, v{V_RD}")
    a(f"v_xor_b32 v{V_RD+1}, 64, v{V_RD}")
    a(f"v_bfe_u32 v{t2}, v{l}, 2, 2")
    a(f"v_add_u32 v{t2}, v{t1}, v{t2}")
    a(f"v_lshlrev_b32 v{t2}, 6, v{t2}")
    a(f"v_bfe_u32 v{t3}, v{l}, 4, 1")
    a(f"v_lshl_add_u32 v{t2}, v{t3}, 5, v{t2}")
    a(f"v_and_b32 v{t3}, 3, v{l}")
    a(f"v_lshl_add_u32 v{t2}, v{t3}, 3, v{t2}")
    a("s_mul_i32 s60, s48, 18432")
    a(f"s_add_u32 s60, s60, {XREG}")
    a(f"v_add_u32 v{V_RD+2}, s60, v{t2}")
    stamp(a, 1)
    a("s_waitcnt vmcnt(21)")
    stamp(a, 2)
    a("s_barrier")

    def rd(i):
        sub, s = i % 2, i // 2
        d = RG + 4 * (i % 6)
        return [f"ds_read_b64_tr_b16 v[{d}:{d+1}], v{V_RD+sub} offset:{s*2048}",
                f"ds_read_b64_tr_b16 v[{d+2}:{d+3}], v{V_RD+sub} offset:{s*2048+1024}"]

    def rdx(s):
        d = RG + 4 * (s % 6)
        return [f"ds_read_b64_tr_b16 v[{d}:{d+1}], v{V_RD+2} offset:{s*1024}",
                f"ds_read_b64_tr_b16 v[{d+2}:{d+3}], v{V_RD+2} offset:{s*1024+512}"]

    for i in range(5):
        a.extend(rd(i))
    stamp(a, 3)
    for i in range(36):
        sub, s = i % 2, i // 2
        rem = min(4, 35 - i)
        P0 = OPT.get("p0", 0)
        vw = f"vmcnt({20 - s + min(17, max(0, i - P0))}) " if sub == 0 else ""
        a(f"s_waitcnt {vw}lgkmcnt({2*rem})")
        w = RG + 4 * (i % 6)
        c = "0" if s == 0 else f"v[{AC[sub]}:{AC[sub]+15}]"
        a(f"v_mfma_f32_32x32x16_bf16 v[{AC[sub]}:{AC[sub]+15}], v[{w}:{w+3}], v[{X+4*s}:{X+4*s+3}], {c}")
        if i + 5 < 36:
            a.extend(rd(i + 5))
        if P0 <= i < P0 + 17:
            a.extend(pfill[i - P0])
    a("s_cmp_eq_u32 s50, 0")
    a("s_cbranch_scc1 k3_nxm0")
    for s in range(5):
        a.extend(rdx(s))
    for s in range(18):
        rem = min(4, 17 - s)
        a(f"s_waitcnt lgkmcnt({2*rem})")
        w = RG + 4 * (s % 6)
        c = "0" if s == 0 else f"v[{AC[2]}:{AC[2]+15}]"
        a(f"v_mfma_f32_32x32x16_bf16 v[{AC[2]}:{AC[2]+15}], v[{w}:{w+3}], v[{X+4*s}:{X+4*s+3}], {c}")
        if s + 5 < 18:
            a.extend(rdx(s + 5))
    a.label("k3_nxm0")
    stamp(a, 5)
    a("s_waitcnt vmcnt(0)")
    TP, TQ = X, X + 16
    for s in range(4):
        for h in range(2):
            r = PP + 8 * s + 4 * h
            c = "0" if (s, h) == (0, 0) else f"v[{TP}:{TP+15}]"
            a(f"v_mfma_f32_32x32x16_bf16 v[{TP}:{TP+15}], v[{E+4*h}:{E+4*h+3}], v[{r}:{r+3}], {c}")
    a("s_cmp_eq_u32 s48, 0")
    a("s_cselect_b64 vcc, -1, 0")
    a(f"v_cndmask_b32 v{t0}, 0, v15, vcc")
    a(f"v_cndmask_b32 v{t1}, v15, 0, vcc")
    a("s_cmp_eq_u32 s50, 0")
    a("s_cbranch_scc1 k3_nxm1")
    for s in range(4):
        for h in range(2):
            r = PQ + 8 * s + 4 * h
            c = "0" if (s, h) == (0, 0) else f"v[{TQ}:{TQ+15}]"
            a(f"v_mfma_f32_32x32x16_bf16 v[{TQ}:{TQ+15}], v[{E+4*h}:{E+4*h+3}], v[{r}:{r+3}], {c}")
    a.label("k3_nxm1")
    a("s_nop 5")
    for r in range(16):
        a(f"v_fmac_f32 v{AC[0]+r}, v{TP+r}, v{t0}")
    for r in range(16):
        a(f"v_fmac_f32 v{AC[1]+r}, v{TP+r}, v{t1}")
    a("s_cmp_eq_u32 s50, 0")
    a("s_cbranch_scc1 k3_nxm")
    for r in range(16):
        a(f"v_fmac_f32 v{AC[2]+r}, v{TQ+r}, v15")
    a.label("k3_nxm")
    stamp(a, 4)
    a(f"v_and_b32 v{t0}, 31, v{l}")
    a(f"v_mul_u32_u24 v{t0}, {IMG_ROW}, v{t0}")
    a(f"v_lshrrev_b32 v{t1}, 5, v{l}")
    a(f"v_lshl_add_u32 v{t0}, v{t1}, 4, v{t0}")
    a(f"s_mul_i32 s60, s48, {IMG}")
    a(f"s_lshr_b32 s62, s{S_WAVE}, 1")
    a(f"s_mul_i32 s62, s62, {32*IMG_ROW}")
    a("s_add_u32 s60, s60, s62")
    a(f"v_add_u32 v{t0}, s60, v{t0}")
    a(f"v_lshrrev_b32 v{t1}, 3, v{l}")
    a(f"v_mul_u32_u24 v{t1}, {IMG_ROW}, v{t1}")
    a(f"v_lshl_add_u32 v{t1}, v{FA+1}, 1, v{t1}")
    a(f"s_mul_i32 s60, s{S_WAVE}, {16*IMG_ROW}")
    a(f"v_add_u32 v{t1}, s60, v{t1}")
    a(f"v_bfe_u32 v{t2}, v{l}, 2, 3")
    a(f"v_mul_u32_u24 v{t2}, {IMG_ROW}, v{t2}")
    a(f"v_lshl_add_u32 v{t2}, v{GA+1}, 1, v{t2}")
    a("s_bfe_u32 s60, s41, 0x10001")
    a("s_lshl_b32 s60, s60, 2")
    a(f"s_add_u32 s60, s60, s{S_WAVE}")
    a(f"s_mul_i32 s60, s60, {8*IMG_ROW}")
    a("s_add_u32 s60, s60, 256")
    a(f"v_add_u32 v{t2}, s60, v{t2}")
    a("s_barrier")
    for sub in range(3):
        if sub == 2:
            a("s_cmp_eq_u32 s50, 0")
            a("s_cbranch_scc1 k3_nxw")
        for i in range(4):
            a(f"ds_write_b128 v{t0}, v[{AC[sub]+4*i}:{AC[sub]+4*i+3}] offset:{sub*128 + 32*i}")
    a.label("k3_nxw")
    a("s_waitcnt lgkmcnt(0)")
    a("s_barrier")
    R = 32
    for j in range(2):
        for kh in range(2):
            for hh in range(2):
                r = R + 16 * j + 8 * kh + 4 * hh
                a(f"ds_read_b128 v[{r}:{r+3}], v{t1} offset:{kh*IMG + j*8*IMG_ROW + 16*hh}")
    for kh in range(2):
        for hh in range(2):
            r = 96 + 8 * kh + 4 * hh
            a(f"ds_read_b128 v[{r}:{r+3}], v{t2} offset:{kh*IMG + 16*hh}")
    a("s_waitcnt vmcnt(0)")

    def final(xr, br, rr, cnt, dst):
        out = []
        for d in range(4):
            out += [f"v_lshlrev_b32 v{64+2*d}, 16, v{br+d}", f"v_and_b32 v{65+2*d}, 0xffff0000, v{br+d}",
                    f"v_lshlrev_b32 v{72+2*d}, 16, v{xr+d}", f"v_and_b32 v{73+2*d}, 0xffff0000, v{xr+d}"]
        out += [f"v_add_f32 v{72+e}, v{72+e}, v{64+e}" for e in range(8)]
        out += [f"s_waitcnt lgkmcnt({cnt})"]
        out += [f"v_add_f32 v{rr+e}, v{rr+e}, v{rr+8+e}" for e in range(8)]
        out += [f"v_add_f32 v{72+e}, v{72+e}, v{rr+e}" for e in range(8)]
        out += [f"v_cvt_pk_bf16_f32 v{dst+d}, v{72+2*d}, v{73+2*d}" for d in range(4)]
        return out

    for j in range(2):
        a.extend(final(FX + 4 * j, FB, R + 16 * j, 8 - 4 * j, 80 + 4 * j))
        a(f"buffer_store_dwordx4 v[{80+4*j}:{83+4*j}], v{FA}, s[20:23], s{56+j} offen")
    a("s_cmp_ge_u32 s41, 4")
    a("s_cbranch_scc1 k3_fin")
    a.extend(final(GX, GB, 96, 0, 88))
    a(f"v_cmp_gt_u32 vcc, 32, v{l}")
    a("s_and_saveexec_b64 s[64:65], vcc")
    a(f"buffer_store_dwordx4 v[88:91], v{D2}, s[20:23], s58 offen")
    a.label("k3_fin")
    diag_dump(a, 2, 4)
    a.label("k3_end")
    a("s_endpgm")
    return a


def main(out):
    k1 = gen4.gen_k1()
    k1.lines = [ln + " sc1" if ln.startswith("buffer_store_dwordx4") else ln for ln in k1.lines]
    k2 = gen5.gen_k2()
    k3 = gen_k3()
    for nm, k in (("k1", k1), ("k2", k2), ("k3", k3)):
        for p in check_hazards(k.lines, nm):
            print(p, file=sys.stderr)
    hdr = open("cdna_kernels/" + NAME + ".s.ref").read().split("; Override launch")[0]
    txt = hdr
    txt += f"; @launch kernel=k1_kernel grid=(256,1,1) block=(256,1,1) lds={2*REGION}\n"
    txt += f"; @launch kernel=k2_kernel grid=(256,1,1) block=(768,1,1) lds={K2_LDS}\n"
    txt += f"; @launch kernel=k3_kernel grid=(256,1,1) block=(256,1,1) lds={K3_LDS}\n"
    txt += '.amdgcn_target "amdgcn-amd-amdhsa--gfx950"\n.text\n'
    for k in (k1, k2, k3):
        txt += k.text()
    txt += '.section .rodata,"a"\n'
    txt += descriptor("k1_kernel", 256)
    txt += descriptor("k2_kernel", 160)
    txt += descriptor("k3_kernel", 256)
    open(out, "w").write(txt)


if __name__ == "__main__":
    if "-diag" in sys.argv:
        gen.DIAG = True
        sys.argv.remove("-diag")
    for x in list(sys.argv):
        if x.startswith("-O"):
            k, v = x[2:].split("=")
            OPT[k] = int(v)
            sys.argv.remove(x)
    main(sys.argv[1] if len(sys.argv) > 1 else "cdna_kernels/" + NAME + ".s")
```
